```python
import torch

def _softmax(x, axis=-1):
    return torch.softmax(x, dim=axis)
def _gelu(x):
    return torch.nn.functional.gelu(x, approximate="tanh")
def _silu(x):
    return torch.nn.functional.silu(x)
def _sigmoid(x):
    return torch.sigmoid(x)
def _layernorm(x, axis=-1, eps=1e-5):
    m = x.mean(dim=axis, keepdim=True)
    v = x.var(dim=axis, keepdim=True, unbiased=False)
    return (x - m) / torch.sqrt(v + eps)
def _scatter_add(tgt, idx, src, axis=0):
    return tgt.clone().index_add_(axis, idx, src)
def _segment_sum(src, seg, n):
    out = torch.zeros((n,) + src.shape[1:], dtype=src.dtype)
    return out.index_add_(0, seg, src)
def _pad(x, pw):
    flat = tuple(v for pair in reversed(pw) for v in pair)
    return torch.nn.functional.pad(x, flat)

kernel_name = 'concat_heads__gqa_block_cached__mha_block_cached__near_ridge'

def setup_inputs():

    _w = (lambda a: (lambda t: t.to(torch.bfloat16) if t.is_floating_point() else t)(torch.as_tensor(a)))
    def _A_setup():
        B, Sq, D = 16, 48, 512
        Hq, Hkv, Sk, Dh = 32, 8, 1024, 128
        assert Hq % Hkv == 0, (Hq, Hkv)
        return {
            "x": _w((lambda *s: torch.randn(*s, dtype=torch.bfloat16) * 0.8)(B, Sq, D)),
            "k_cache": _w((lambda *s: torch.randn(*s, dtype=torch.bfloat16) * 0.8)(B, Hkv, Sk, Dh)),
            "v_cache": _w((lambda *s: torch.randn(*s, dtype=torch.bfloat16) * 0.05)(B, Hkv, Sk, Dh)),
            "wq": _w((lambda *s: torch.randn(*s, dtype=torch.bfloat16) * 0.8)(D, Hq * Dh) * (D ** -0.5)),
            "wo": _w((lambda *s: torch.randn(*s, dtype=torch.bfloat16) * 0.05)(Hq * Dh, D) * ((Hq * Dh) ** -0.5)),
        }
    _A_in = _A_setup()

    def _B_setup():
        B, Sq, D = 16, 48, 512
        H, Sk, Dh = 32, 1024, 128
        return {
            "x": _w((lambda *s: torch.randn(*s, dtype=torch.bfloat16) * 0.8)(B, Sq, D)),
            "k_cache": _w((lambda *s: torch.randn(*s, dtype=torch.bfloat16) * 0.8)(B, H, Sk, Dh)),
            "v_cache": _w((lambda *s: torch.randn(*s, dtype=torch.bfloat16) * 0.05)(B, H, Sk, Dh)),
            "wq": _w((lambda *s: torch.randn(*s, dtype=torch.bfloat16) * 0.8)(D, H * Dh) * (D ** -0.5)),
            "wo": _w((lambda *s: torch.randn(*s, dtype=torch.bfloat16) * 0.05)(H * Dh, D) * ((H * Dh) ** -0.5)),
        }
    _B_in = _B_setup()

    return {
        "A_x": _A_in["x"],
        "A_k_cache": _A_in["k_cache"],
        "A_v_cache": _A_in["v_cache"],
        "A_wq": _A_in["wq"],
        "A_wo": _A_in["wo"],
        "B_x": _B_in["x"],
        "B_k_cache": _B_in["k_cache"],
        "B_v_cache": _B_in["v_cache"],
        "B_wq": _B_in["wq"],
        "B_wo": _B_in["wo"],
    }

def reference(A_x, A_k_cache, A_v_cache, A_wq, A_wo, B_x, B_k_cache, B_v_cache, B_wq, B_wo):
    def _A_ref(x, k_cache, v_cache, wq, wo):
        B, Sq, D = x.shape
        Hq, Dh = 32, 128
        Hkv = k_cache.shape[1]
        rep = Hq // Hkv
        q = (lambda x, *d: x.permute(*d))((x @ wq).reshape(B, Sq, Hq, Dh), 0, 2, 1, 3)
        k = (lambda x, n, axis: torch.repeat_interleave(x, n, dim=axis))(k_cache, rep, axis=1)
        v = (lambda x, n, axis: torch.repeat_interleave(x, n, dim=axis))(v_cache, rep, axis=1)
        scores = torch.einsum("bhqd,bhkd->bhqk", q, k) * (Dh ** -0.5)
        p = _softmax(scores, axis=-1)
        o = torch.einsum("bhqk,bhkd->bhqd", p, v)
        return (lambda x, *d: x.permute(*d))(o, 0, 2, 1, 3).reshape(B, Sq, Hq * Dh) @ wo

    def _B_ref(x, k_cache, v_cache, wq, wo):
        B, Sq, D = x.shape
        H, Dh = 32, 128
        q = (lambda x, *d: x.permute(*d))((x @ wq).reshape(B, Sq, H, Dh), 0, 2, 1, 3)
        scores = torch.einsum("bhqd,bhkd->bhqk", q, k_cache) * (Dh ** -0.5)
        p = _softmax(scores, axis=-1)
        o = torch.einsum("bhqk,bhkd->bhqd", p, v_cache)
        return (lambda x, *d: x.permute(*d))(o, 0, 2, 1, 3).reshape(B, Sq, H * Dh) @ wo

    a = _A_ref(A_x, A_k_cache, A_v_cache, A_wq, A_wo)
    b = _B_ref(B_x, B_k_cache, B_v_cache, B_wq, B_wo)
    return torch.concatenate([a, b], axis=-1)
```

```python
NAME = "concat_heads__gqa_block_cached__mha_block_cached__near_ridge"

HEADER = """; Kernarg layout for this problem (104 bytes, ptrs only, base s[0:1]):
"""

class Asm:
    def __init__(self):
        self.lines = []
        self.nlabel = 0
    def __call__(self, s, *a):
        if a:
            s = s % a
        self.lines.append("    " + s)
    def raw(self, s):
        self.lines.append(s)
    def label(self, name):
        self.lines.append(name + ":")
    def newlabel(self, base="L"):
        self.nlabel += 1
        return "%s_%d" % (base, self.nlabel)
    def comment(self, s):
        self.lines.append("    ; " + s)
    def text(self):
        return "\n".join(self.lines) + "\n"

def kernel_begin(a, name):
    a.raw(".globl %s" % name)
    a.raw(".p2align 8")
    a.raw(".type %s,@function" % name)
    a.label(name)

def kernel_desc(name, vgpr, sgpr=102, accum=None, wgy=False):
    if accum is None:
        accum = min(256, (vgpr + 3) // 4 * 4)
    s = ".p2align 6\n.amdhsa_kernel %s\n" % name
    s += "  .amdhsa_next_free_vgpr %d\n" % vgpr
    s += "  .amdhsa_next_free_sgpr %d\n" % sgpr
    s += "  .amdhsa_accum_offset %d\n" % accum
    s += "  .amdhsa_group_segment_fixed_size 0\n"
    s += "  .amdhsa_kernarg_size 104\n"
    s += "  .amdhsa_user_sgpr_count 2\n"
    s += "  .amdhsa_user_sgpr_kernarg_segment_ptr 1\n"
    s += "  .amdhsa_system_sgpr_workgroup_id_x 1\n"
    if wgy:
        s += "  .amdhsa_system_sgpr_workgroup_id_y 1\n"
    s += ".end_amdhsa_kernel\n"
    return s

def full_file(launches, body, descs):
    s = HEADER
    if len(launches) == 1 and launches[0][0] == NAME + "_kernel":
        k, g, b, l = launches[0]
        s += "; @launch grid=(%d,%d,%d) block=(%d,%d,%d) lds=%d\n" % (*g, *b, l)
    else:
        for k, g, b, l in launches:
            s += "; @launch kernel=%s grid=(%d,%d,%d) block=(%d,%d,%d) lds=%d\n" % (k, *g, *b, l)
    s += '.amdgcn_target "amdgcn-amd-amdhsa--gfx950"\n.text\n'
    s += body
    s += '.section .rodata,"a"\n'
    for d in descs:
        s += d
    return s
```

```python
import sys, math, struct
from asmgen import *

def f2u(f):
    return struct.unpack("<I", struct.pack("<f", f))[0]

class VM:
    def __init__(self, a):
        self.a = a
        self.q = []
    def issue(self, tag):
        self.q.append(tag)
    def wait(self, tag):
        idx = max(i for i, t in enumerate(self.q) if t == tag)
        n = len(self.q) - 1 - idx
        assert n <= 63
        self.a("s_waitcnt vmcnt(%d)", n)
        self.q = self.q[idx + 1:]

def vr(b, n=4):
    return "v[%d:%d]" % (b, b + n - 1)
def ar(b, n=4):
    return "a[%d:%d]" % (b, b + n - 1)

MFMA = "v_mfma_f32_16x16x32_bf16"

def gen_k1(a, kn, T=8.0):
    kernel_begin(a, kn)
    vKd, vVd, vKr, vVr, vM = 8, 12, 14, 18, 26
    vXo, vWo, vOo = 29, 30, 31
    O = lambda e, j: 32 + (e * 3 + j) * 4
    L = lambda j: 128 + j * 4
    S = lambda t, j: 140 + (t * 3 + j) * 4
    P = lambda j: 164 + j * 4
    TMP = 176
    Q = lambda j, s: 192 + (j * 4 + s) * 4
    ONES = 240
    WR = lambda buf, i: 128 + buf * 32 + i * 4
    WT = lambda e: 224 + e * 4
    KF = lambda t, s: (t * 4 + s) * 4
    VF = lambda e: 32 + e * 4
    XF = lambda buf, j: 64 + buf * 12 + j * 4
    sX, sW, sK, sV, sO = 36, 40, 44, 48, 52
    sC, sT, sLO, sSL, sSH, sCNT, sKV, sLB, sT1, sWoff = 56, 57, 58, 59, 60, 61, 62, 63, 64, 65
    srd = lambda b: "s[%d:%d]" % (b, b + 3)

    a("s_cmp_ge_u32 s2, 256")
    a("s_cbranch_scc1 K1_end")
    a("s_load_dwordx8 s[4:11], s[0:1], 0")
    a("s_load_dwordx8 s[12:19], s[0:1], 40")
    a("s_load_dwordx2 s[20:21], s[0:1], 96")
    a("v_lshrrev_b32 v1, 6, v0")
    a("v_and_b32 v0, 63, v0")
    a("v_readfirstlane_b32 s22, v1")
    a("v_and_b32 v2, 15, v0")
    a("v_lshrrev_b32 v3, 4, v0")
    a("s_and_b32 s23, s2, 7")
    a("s_lshr_b32 s24, s2, 3")
    a("s_and_b32 s24, s24, 1")
    a("s_lshr_b32 s25, s2, 4")
    a("s_lshl_b32 s26, s23, 2")
    a("s_lshl_b32 s27, s24, 1")
    a("s_add_u32 s26, s26, s27")
    a("s_and_b32 s27, s22, 1")
    a("s_add_u32 s26, s26, s27")
    a("s_lshr_b32 s27, s22, 1")
    a("s_lshl_b32 s28, s25, 3")
    a("s_add_u32 s28, s28, s23")
    a("s_lshl_b32 s29, s25, 5")
    a("s_add_u32 s29, s29, s26")
    a("s_cmp_eq_u32 s27, 0")
    a("s_cselect_b32 s28, s28, s29")
    a("s_lshl_b32 s28, s28, 18")
    a("s_mul_i32 s30, s25, 49152")
    a("s_lshl_b32 s31, s26, 8")
    a("s_lshl_b32 s32, s27, 9")
    a("s_add_u32 s32, s32, s29")
    a("s_mul_i32 s32, s32, 12288")
    a("s_lshl_b32 s%d, s22, 15", sLB)
    a("s_mov_b32 s%d, 0x%x", sC, f2u(128 ** -0.5 * math.log2(math.e)))
    a("s_mov_b32 s%d, 0xff800000", sT)
    a("s_mov_b32 s%d, 0xff7fffff", sLO)
    a("s_mov_b32 s%d, 0x05040100", sSL)
    a("s_mov_b32 s%d, 0x07060302", sSH)
    a("v_lshlrev_b32 v4, 2, v3")
    a("v_xor_b32 v4, v4, v2")
    a("v_lshlrev_b32 v5, 8, v3")
    for i in range(4):
        a("v_xor_b32 v6, %d, v4", i)
        a("v_lshl_add_u32 v%d, v6, 4, v5", vKd + i)
    a("v_lshlrev_b32 v4, 1, v3")
    a("v_xor_b32 v4, v4, v2")
    for i in range(2):
        a("v_xor_b32 v6, %d, v4", 8 * i)
        a("v_lshl_add_u32 v%d, v6, 4, v5", vVd + i)
    a("v_lshlrev_b32 v4, 2, v2")
    a("v_lshrrev_b32 v5, 2, v2")
    a("v_or_b32 v4, v4, v5")
    a("v_and_b32 v4, 15, v4")
    a("v_lshlrev_b32 v5, 2, v3")
    a("v_xor_b32 v4, v4, v5")
    a("v_lshlrev_b32 v5, 8, v2")
    a("v_add_u32 v5, s%d, v5", sLB)
    for s in range(4):
        a("v_xor_b32 v6, %d, v4", s)
        a("v_lshl_add_u32 v%d, v6, 4, v5", vKr + s)
    a("v_lshrrev_b32 v4, 2, v2")
    a("v_lshl_add_u32 v4, v3, 2, v4")
    a("v_and_b32 v5, 3, v2")
    a("v_lshlrev_b32 v5, 3, v5")
    a("v_lshl_add_u32 v5, v4, 8, v5")
    a("v_add_u32 v5, s%d, v5", sLB)
    a("v_and_b32 v4, 7, v4")
    for e in range(8):
        a("v_xor_b32 v6, %d, v4", e)
        a("v_lshl_add_u32 v%d, v6, 5, v5", vVr + e)
    a("v_lshlrev_b32 v4, 10, v2")
    a("v_lshl_add_u32 v%d, v3, 4, v4", vXo)
    a("v_lshlrev_b32 v4, 16, v3")
    a("v_lshl_add_u32 v%d, v2, 4, v4", vWo)
    a("v_lshlrev_b32 v%d, 4, v0", vOo)
    a("s_waitcnt lgkmcnt(0)")
    a("s_cmp_eq_u32 s27, 0")
    for k in range(8):
        a("s_cselect_b32 s%d, s%d, s%d", 4 + k, 4 + k, 12 + k)
    a("s_add_u32 s%d, s4, s30", sX); a("s_addc_u32 s%d, s5, 0", sX + 1); a("s_mov_b32 s%d, 49152", sX + 2); a("s_mov_b32 s%d, 0x20000", sX + 3)
    a("s_add_u32 s%d, s10, s31", sW); a("s_addc_u32 s%d, s11, 0", sW + 1)
    a("s_sub_u32 s%d, 0x400000, s31", sW + 2); a("s_mov_b32 s%d, 0x20000", sW + 3)
    a("s_add_u32 s%d, s6, s28", sK); a("s_addc_u32 s%d, s7, 0", sK + 1); a("s_mov_b32 s%d, 0x40000", sK + 2); a("s_mov_b32 s%d, 0x20000", sK + 3)
    a("s_add_u32 s%d, s8, s28", sV); a("s_addc_u32 s%d, s9, 0", sV + 1); a("s_mov_b32 s%d, 0x40000", sV + 2); a("s_mov_b32 s%d, 0x20000", sV + 3)
    a("s_add_u32 s%d, s20, s32", sO); a("s_addc_u32 s%d, s21, 0", sO + 1); a("s_mov_b32 s%d, 12288", sO + 2); a("s_mov_b32 s%d, 0x20000", sO + 3)

    vm = VM(a)
    def dma_piece(isV, par, i, tile_imm=None, tag=None):
        half, ii = i >> 2, i & 3
        if ii == 0:
            a("s_add_u32 m0, s%d, %d", sLB, par * 16384 + isV * 8192 + half * 4096)
            if tile_imm is None:
                a("s_add_u32 s%d, s%d, %d", sT1, sKV, half * 4096)
            else:
                a("s_mov_b32 s%d, %d", sT1, tile_imm + half * 4096)
        vo = (vVd + (ii & 1)) if isV else (vKd + ii)
        a("buffer_load_dwordx4 v%d, %s, s%d offen offset:%d nt lds", vo, srd(sV if isV else sK), sT1, ii * 1024)
        if tag is not None:
            vm.issue(tag)

    def qload(s):
        buf = s % 3
        for j in range(3):
            a("s_mov_b32 s%d, %d", sWoff, j * 16384)
            a("buffer_load_dwordx4 %s, v%d, %s, s%d offen offset:%d", ar(XF(buf, j)), vXo, srd(sX), sWoff, s * 64)
            vm.issue(("G", s))
        for i in range(8):
            a("s_mov_b32 s%d, %d", sWoff, (32 * s + i) * 8192)
            a("buffer_load_dwordx4 %s, v%d, %s, s%d offen", vr(WR(buf, i)), vWo, srd(sW), sWoff)
            vm.issue(("G", s))
    pre = [(isV, par, i) for par in range(2) for isV in range(2) for i in range(8)]
    for s in range(3):
        qload(s)
    for s in range(16):
        buf = s % 3
        vm.wait(("G", s))
        for e in range(8):
            for jj in range(4):
                a("v_perm_b32 v%d, v%d, v%d, s%d", WT(e) + jj, WR(buf, 2 * jj + 1) + (e >> 1), WR(buf, 2 * jj) + (e >> 1), sSH if e & 1 else sSL)
        a("s_nop 1")
        for e in range(8):
            for j in range(3):
                a("%s %s, %s, %s, %s", MFMA, vr(O(e, j)), vr(WT(e)), ar(XF(buf, j)), "0" if s == 0 else vr(O(e, j)))
        if s + 3 < 16:
            qload(s + 3)
        for k in range(2):
            isV, par, i = pre[2 * s + k]
            half, ii = i >> 2, i & 3
            if k == 0:
                a("s_add_u32 m0, s%d, %d", sLB, par * 16384 + isV * 8192 + half * 4096)
                a("s_mov_b32 s%d, %d", sT1, par * 8192 + half * 4096)
            vo = (vVd + (ii & 1)) if isV else (vKd + ii)
            a("buffer_load_dwordx4 v%d, %s, s%d offen offset:%d nt lds", vo, srd(sV if isV else sK), sT1, ii * 1024)
            vm.issue(("D", par))
    a("s_nop 7")
    a("s_nop 1")
    for j in range(3):
        for s in range(4):
            for k in range(4):
                a("v_cvt_pk_bf16_f32 v%d, v%d, v%d", Q(j, s) + k, O(2 * k, j) + s, O(2 * k + 1, j) + s)
    for r in range(32, 140):
        a("v_mov_b32 v%d, 0", r)
    for k in range(4):
        a("v_mov_b32 v%d, 0x3f803f80", ONES + k)
    for j in range(3):
        a("v_mov_b32 v%d, 0", vM + j)
    a("s_mov_b32 s%d, 16384", sKV)
    a("s_mov_b32 s%d, 0", sCNT)

    a.label("K1_loop")
    for par in range(2):
        kb, vb = par * 16384, par * 16384 + 8192
        a("s_waitcnt vmcnt(16)")
        for t in range(2):
            for s in range(4):
                a("ds_read_b128 %s, v%d offset:%d", ar(KF(t, s)), vKr + s, kb + t * 4096)
        def vread(e):
            for hh in range(2):
                a("ds_read_b64_tr_b16 %s, v%d offset:%d", ar(VF(e) + 2 * hh, 2), vVr + e, vb + hh * 4096)
        for e in range(3):
            vread(e)
        for t in range(2):
            a("s_waitcnt lgkmcnt(%d)", 10 if t == 0 else 4)
            if t == 1:
                for e in range(3, 8):
                    vread(e)
            for s in range(4):
                for j in range(3):
                    a("%s %s, %s, %s, %s", MFMA, vr(S(t, j)), ar(KF(t, s)), vr(Q(j, s)), "0" if s == 0 else vr(S(t, j)))
        a("s_waitcnt lgkmcnt(0)")
        for isV in range(2):
            for i in range(8):
                dma_piece(isV, par, i)
        a("s_add_u32 s%d, s%d, 8192", sKV, sKV)
        for t in range(2):
            for j in range(3):
                for r in range(4):
                    a("v_fma_f32 v%d, v%d, s%d, -v%d", S(t, j) + r, S(t, j) + r, sC, vM + j)
        regs = [S(t, j) + r for t in range(2) for j in range(3) for r in range(4)]
        a("v_max3_f32 v%d, v%d, v%d, v%d", TMP, regs[0], regs[1], regs[2])
        a("v_max3_f32 v%d, v%d, v%d, v%d", TMP + 1, regs[3], regs[4], regs[5])
        for k in range(6, 24, 4):
            a("v_max3_f32 v%d, v%d, v%d, v%d", TMP, TMP, regs[k], regs[k + 1])
            if k + 2 < 24:
                a("v_max3_f32 v%d, v%d, v%d, v%d", TMP + 1, TMP + 1, regs[k + 2], regs[k + 3])
        a("v_max_f32 v%d, v%d, v%d", TMP, TMP, TMP + 1)
        a("v_cmp_nge_f32 vcc, s%d, v%d", sT, TMP)
        lab = "K1_norescale%d" % par
        a("s_cbranch_vccz %s", lab)
        for j in range(3):
            d = TMP + 2 + j
            a("v_max3_f32 v%d, v%d, v%d, v%d", d, S(0, j), S(0, j) + 1, S(0, j) + 2)
            a("v_max3_f32 v%d, v%d, v%d, v%d", d, d, S(0, j) + 3, S(1, j))
            a("v_max3_f32 v%d, v%d, v%d, v%d", d, d, S(1, j) + 1, S(1, j) + 2)
            a("v_max_f32 v%d, v%d, v%d", d, d, S(1, j) + 3)
        for sw in ("v_permlane32_swap_b32", "v_permlane16_swap_b32"):
            for j in range(3):
                a("v_mov_b32 v%d, v%d", TMP + 5 + j, TMP + 2 + j)
            a("s_nop 1")
            for j in range(3):
                a("%s v%d, v%d", sw, TMP + 2 + j, TMP + 5 + j)
            a("s_nop 1")
            for j in range(3):
                a("v_max_f32 v%d, v%d, v%d", TMP + 2 + j, TMP + 2 + j, TMP + 5 + j)
        for j in range(3):
            d = TMP + 2 + j
            a("v_max_f32 v%d, s%d, v%d", d, sLO, d)
            a("v_add_f32 v%d, v%d, v%d", vM + j, vM + j, d)
            a("v_max_f32 v%d, 0, v%d", TMP + 5 + j, d)
            a("v_exp_f32 v%d, -v%d", TMP + 5 + j, TMP + 5 + j)
        for j in range(3):
            for t in range(2):
                for r in range(4):
                    a("v_sub_f32 v%d, v%d, v%d", S(t, j) + r, S(t, j) + r, TMP + 2 + j)
        for j in range(3):
            for e in range(8):
                for r in range(4):
                    a("v_mul_f32 v%d, v%d, v%d", O(e, j) + r, O(e, j) + r, TMP + 5 + j)
            for r in range(4):
                a("v_mul_f32 v%d, v%d, v%d", L(j) + r, L(j) + r, TMP + 5 + j)
        a("s_mov_b32 s%d, 0x%x", sT, f2u(T))
        a("s_mov_b32 s%d, 0", sLO)
        a.label(lab)
        for t in range(2):
            for j in range(3):
                for r in range(4):
                    a("v_exp_f32 v%d, v%d", S(t, j) + r, S(t, j) + r)
        a("s_nop 0")
        for j in range(3):
            for t in range(2):
                for k in range(2):
                    a("v_cvt_pk_bf16_f32 v%d, v%d, v%d", P(j) + 2 * t + k, S(t, j) + 2 * k, S(t, j) + 2 * k + 1)
        a("s_nop 1")
        for e in range(8):
            for j in range(3):
                a("%s %s, %s, %s, %s", MFMA, vr(O(e, j)), ar(VF(e)), vr(P(j)), vr(O(e, j)))
        for j in range(3):
            a("%s %s, %s, %s, %s", MFMA, vr(L(j)), vr(ONES), vr(P(j)), vr(L(j)))
    a("s_add_u32 s%d, s%d, 1", sCNT, sCNT)
    a("s_cmp_lt_u32 s%d, 16", sCNT)
    a("s_cbranch_scc1 K1_loop")
    a("s_nop 7")
    a("s_nop 1")
    for j in range(3):
        a("v_rcp_f32 v%d, v%d", TMP + j, L(j))
    a("s_nop 0")
    for j in range(3):
        for e in range(8):
            for r in range(4):
                a("v_mul_f32 v%d, v%d, v%d", O(e, j) + r, O(e, j) + r, TMP + j)
    for u in range(4):
        for j in range(3):
            d = Q(j, u)
            for t in range(2):
                for k in range(2):
                    a("v_cvt_pk_bf16_f32 v%d, v%d, v%d", d + 2 * t + k, O(2 * u + t, j) + 2 * k, O(2 * u + t, j) + 2 * k + 1)
            off = (u * 3 + j) * 1024
            a("s_mov_b32 s%d, %d", sT1, off)
            a("buffer_store_dwordx4 %s, v%d, %s, s%d offen", vr(d), vOo, srd(sO), sT1)
    a("s_waitcnt vmcnt(0)")
    a.label("K1_end")
    a("s_endpgm")


def gen_k2(a, kn):
    kernel_begin(a, kn)
    DEPTH = 4
    ACC = lambda e, j: 16 + (e * 3 + j) * 4
    WT = lambda e: 64 + e * 4
    WR = lambda buf, i: 80 + buf * 16 + i * 2
    OF = lambda buf, j: 144 + buf * 12 + j * 4
    sOo, sW, sOut = 36, 40, 44
    sSL, sSH, sT1 = 48, 49, 50
    vOo, vW0, vW1 = 8, 9, 10
    srd = lambda b: "s[%d:%d]" % (b, b + 3)
    a("s_cmp_ge_u32 s2, 256")
    a("s_cbranch_scc1 K2_end")
    a("s_load_dwordx2 s[4:5], s[0:1], 32")
    a("s_load_dwordx4 s[8:11], s[0:1], 72")
    a("s_load_dwordx2 s[12:13], s[0:1], 96")
    a("v_lshrrev_b32 v1, 6, v0")
    a("v_and_b32 v0, 63, v0")
    a("v_readfirstlane_b32 s22, v1")
    a("v_and_b32 v2, 15, v0")
    a("v_lshrrev_b32 v3, 4, v0")
    a("s_and_b32 s23, s2, 7")
    a("s_lshr_b32 s24, s23, 2")
    a("s_lshr_b32 s25, s2, 3")
    a("s_lshr_b32 s26, s25, 2")
    a("s_and_b32 s27, s23, 2")
    a("s_lshl_b32 s27, s27, 2")
    a("s_add_u32 s26, s26, s27")
    a("s_and_b32 s27, s23, 1")
    a("s_lshl_b32 s27, s27, 2")
    a("s_and_b32 s28, s25, 3")
    a("s_add_u32 s27, s27, s28")
    a("s_lshl_b32 s28, s24, 4")
    a("s_add_u32 s28, s28, s26")
    a("s_lshl_b32 s28, s28, 5")
    a("s_lshl_b32 s29, s22, 2")
    a("s_add_u32 s28, s28, s29")
    a("s_mul_i32 s28, s28, 12288")
    a("s_lshl_b32 s29, s22, 19")
    a("s_lshl_b32 s30, s27, 7")
    a("s_add_u32 s29, s29, s30")
    a("s_mov_b32 s%d, 0x05040100", sSL)
    a("s_mov_b32 s%d, 0x07060302", sSH)
    a("v_lshlrev_b32 v%d, 4, v0", vOo)
    a("v_lshlrev_b32 v4, 12, v3")
    a("v_lshl_add_u32 v%d, v2, 3, v4", vW0)
    a("v_add_u32 v%d, 0x4000, v%d", vW1, vW0)
    a("s_waitcnt lgkmcnt(0)")
    a("s_cmp_eq_u32 s24, 0")
    a("s_cselect_b32 s4, s4, s8")
    a("s_cselect_b32 s5, s5, s9")
    a("s_add_u32 s%d, s12, s28", sOo); a("s_addc_u32 s%d, s13, 0", sOo + 1); a("s_mov_b32 s%d, 49152", sOo + 2); a("s_mov_b32 s%d, 0x20000", sOo + 3)
    a("s_add_u32 s%d, s4, s29", sW); a("s_addc_u32 s%d, s5, 0", sW + 1)
    a("s_sub_u32 s%d, 0x400000, s29", sW + 2); a("s_mov_b32 s%d, 0x20000", sW + 3)
    a("s_mov_b32 s%d, s10", sOut); a("s_mov_b32 s%d, s11", sOut + 1); a("s_mov_b32 s%d, %d", sOut + 2, 16 * 48 * 1024 * 2); a("s_mov_b32 s%d, 0x20000", sOut + 3)
    vm = VM(a)
    def load(s):
        buf = s % DEPTH
        a("s_mov_b32 s%d, %d", sT1, s * 3072)
        for j in range(3):
            a("buffer_load_dwordx4 %s, v%d, %s, s%d offen offset:%d", vr(OF(buf, j)), vOo, srd(sOo), sT1, j * 1024)
            vm.issue(s)
        a("s_mov_b32 s%d, %d", sT1, s * 32768)
        for i in range(8):
            a("buffer_load_dwordx2 %s, v%d, %s, s%d offen offset:%d", vr(WR(buf, i), 2), vW1 if i >= 4 else vW0, srd(sW), sT1, (i & 3) * 1024)
            vm.issue(s)
    for s in range(DEPTH):
        load(s)
    for s in range(16):
        buf = s % DEPTH
        vm.wait(s)
        for e in range(4):
            for jj in range(4):
                a("v_perm_b32 v%d, v%d, v%d, s%d", WT(e) + jj, WR(buf, 2 * jj + 1) + (e >> 1), WR(buf, 2 * jj) + (e >> 1), sSH if e & 1 else sSL)
        a("s_nop 1")
        for e in range(4):
            for j in range(3):
                a("%s %s, %s, %s, %s", MFMA, vr(ACC(e, j)), vr(WT(e)), vr(OF(buf, j)), "0" if s == 0 else vr(ACC(e, j)))
        if s + DEPTH < 16:
            load(s + DEPTH)
    a("s_nop 7")
    a("s_nop 1")
    a("s_mul_i32 s30, s22, 12288")
    a("v_add_u32 v4, s30, v%d", vOo)
    for e in range(4):
        for j in range(3):
            a("ds_write_b128 v4, %s offset:%d", vr(ACC(e, j)), (e * 3 + j) * 1024)
    a("s_waitcnt lgkmcnt(0)")
    a("s_barrier")
    a("s_cmp_ge_u32 s22, 6")
    a("s_cbranch_scc1 K2_end")
    a("s_lshr_b32 s30, s22, 1")
    a("s_and_b32 s31, s22, 1")
    a("s_lshl_b32 s32, s30, 10")
    a("s_lshl_b32 s33, s31, 3")
    a("s_add_u32 s32, s32, s33")
    a("v_add_u32 v4, s32, v%d", vOo)
    a("v_add_u32 v5, 0xc000, v4")
    R = lambda w, e: 64 + (w * 4 + e) * 2
    for w in range(8):
        for e in range(4):
            a("ds_read_b64 %s, v%d offset:%d", vr(R(w, e), 2), 4 if w < 4 else 5, (w & 3) * 12288 + e * 3072)
        if w & 1:
            a("s_waitcnt lgkmcnt(4)")
    a("s_waitcnt lgkmcnt(0)")
    for w in range(1, 8):
        for e in range(4):
            for r in range(2):
                a("v_add_f32 v%d, v%d, v%d", R(0, e) + r, R(0, e) + r, R(w, e) + r)
    for r in range(2):
        for k in range(2):
            a("v_cvt_pk_bf16_f32 v%d, v%d, v%d", 16 + r * 2 + k, R(0, 2 * k) + r, R(0, 2 * k + 1) + r)
    a("s_mul_i32 s32, s26, 48")
    a("s_lshl_b32 s33, s30, 4")
    a("s_add_u32 s32, s32, s33")
    a("s_lshl_b32 s32, s32, 11")
    a("s_lshl_b32 s33, s24, 10")
    a("s_add_u32 s32, s32, s33")
    a("s_lshl_b32 s33, s27, 7")
    a("s_add_u32 s32, s32, s33")
    a("s_lshl_b32 s33, s31, 4")
    a("s_add_u32 s32, s32, s33")
    a("v_lshlrev_b32 v4, 11, v2")
    a("v_lshl_add_u32 v4, v3, 5, v4")
    a("buffer_store_dwordx4 v[16:19], v4, %s, s32 offen", srd(sOut))
    a("s_waitcnt vmcnt(0)")
    a.label("K2_end")
    a("s_endpgm")


def main(fname):
    a = Asm()
    gen_k1(a, "attn_kernel")
    gen_k2(a, "oproj_kernel")
    txt = full_file([("attn_kernel", (256, 1, 1), (256, 1, 1), 131072), ("oproj_kernel", (256, 1, 1), (512, 1, 1), 98304)],
                    a.text(), [kernel_desc("attn_kernel", 256 + 100, accum=256), kernel_desc("oproj_kernel", 192)])
    open(fname, "w").write(txt)

if __name__ == "__main__":
    main(sys.argv[1] if len(sys.argv) > 1 else "v1.s")
```

```python
import sys, math, struct
from asmgen import *

def f2u(f):
    return struct.unpack("<I", struct.pack("<f", f))[0]

class VM:
    def __init__(self, a):
        self.a = a
        self.q = []
    def issue(self, tag):
        self.q.append(tag)
    def wait(self, tag):
        idx = max(i for i, t in enumerate(self.q) if t == tag)
        n = len(self.q) - 1 - idx
        assert n <= 63
        self.a("s_waitcnt vmcnt(%d)", n)
        self.q = self.q[idx + 1:]

def vr(b, n=4):
    return "v[%d:%d]" % (b, b + n - 1)
def ar(b, n=4):
    return "a[%d:%d]" % (b, b + n - 1)

MFMA = "v_mfma_f32_16x16x32_bf16"

def stamp(a, i):
    a("s_memrealtime s[%d:%d]", 70 + 2 * i, 71 + 2 * i)
    a("s_waitcnt lgkmcnt(0)")

def seg(a, i):
    a("s_memtime s[98:99]")
    a("s_waitcnt lgkmcnt(0)")
    a("s_sub_u32 s100, s98, s96")
    a("s_add_u32 s%d, s%d, s100", 78 + 2 * i, 78 + 2 * i)
    a("s_mov_b32 s96, s98")

def stamp_store(a, n, wsreg, idreg_expr):
    a("s_lshl_b32 s68, s68, 6")
    a("s_add_u32 s68, s68, 0x1000000")
    a("s_add_u32 s92, s%d, s68", wsreg)
    a("s_addc_u32 s93, s%d, 0", wsreg + 1)
    a("s_mov_b32 s94, 64")
    a("s_mov_b32 s95, 0x20000")
    a("v_mov_b32 v1, 0")
    for i in range(n):
        a("v_mov_b32 v2, s%d", 70 + 2 * i)
        a("buffer_store_dword v2, v1, s[92:95], 0 offen offset:%d", 4 * i)
    a("s_waitcnt vmcnt(0)")

def gen_k1(a, kn, T=8.0, prof=False):
    kernel_begin(a, kn)
    vKd, vVd, vKr, vVr, vM = 8, 12, 14, 18, 26
    vXo, vWo, vOo = 29, 30, 31
    O = lambda e, j: 32 + (e * 3 + j) * 4
    L = lambda j: 128 + j * 4
    S = lambda t, j: 140 + (t * 3 + j) * 4
    P = lambda j: 164 + j * 4
    TMP = 176
    Q = lambda j, s: 192 + (j * 4 + s) * 4
    ONES = 240
    WR = lambda buf, i: 128 + buf * 32 + i * 4
    WT = lambda e: 224 + e * 4
    KF = lambda t, s: (t * 4 + s) * 4
    VF = lambda e: 32 + e * 4
    XF = lambda buf, j: 64 + buf * 12 + j * 4
    sX, sW, sK, sV, sO = 36, 40, 44, 48, 52
    sC, sT, sLO, sSL, sSH, sCNT, sKV, sLB, sT1, sWoff = 56, 57, 58, 59, 60, 61, 62, 63, 64, 65
    srd = lambda b: "s[%d:%d]" % (b, b + 3)

    a("s_cmp_ge_u32 s2, 256")
    a("s_cbranch_scc1 K1_end")
    if prof: stamp(a, 0)
    a("s_load_dwordx8 s[4:11], s[0:1], 0")
    a("s_load_dwordx8 s[12:19], s[0:1], 40")
    a("s_load_dwordx2 s[20:21], s[0:1], 96")
    a("v_lshrrev_b32 v1, 6, v0")
    a("v_and_b32 v0, 63, v0")
    a("v_readfirstlane_b32 s22, v1")
    a("v_and_b32 v2, 15, v0")
    a("v_lshrrev_b32 v3, 4, v0")
    a("s_and_b32 s23, s2, 7")
    a("s_lshr_b32 s24, s2, 3")
    a("s_and_b32 s24, s24, 1")
    a("s_lshr_b32 s25, s2, 4")
    a("s_lshl_b32 s26, s23, 2")
    a("s_lshl_b32 s27, s24, 1")
    a("s_add_u32 s26, s26, s27")
    a("s_and_b32 s27, s22, 1")
    a("s_add_u32 s26, s26, s27")
    a("s_lshr_b32 s27, s22, 1")
    a("s_lshl_b32 s28, s25, 3")
    a("s_add_u32 s28, s28, s23")
    a("s_lshl_b32 s29, s25, 5")
    a("s_add_u32 s29, s29, s26")
    a("s_cmp_eq_u32 s27, 0")
    a("s_cselect_b32 s28, s28, s29")
    a("s_lshl_b32 s28, s28, 18")
    a("s_mul_i32 s30, s25, 49152")
    a("s_lshl_b32 s31, s26, 8")
    a("s_lshl_b32 s32, s27, 9")
    a("s_add_u32 s32, s32, s29")
    a("s_mul_i32 s32, s32, 12288")
    a("s_lshl_b32 s%d, s22, 15", sLB)
    a("s_mov_b32 s%d, 0x%x", sC, f2u(128 ** -0.5 * math.log2(math.e)))
    a("s_mov_b32 s%d, 0xff800000", sT)
    a("s_mov_b32 s%d, 0xff7fffff", sLO)
    a("s_mov_b32 s%d, 0x05040100", sSL)
    a("s_mov_b32 s%d, 0x07060302", sSH)
    a("v_lshlrev_b32 v4, 2, v3")
    a("v_xor_b32 v4, v4, v2")
    a("v_lshlrev_b32 v5, 8, v3")
    for i in range(4):
        a("v_xor_b32 v6, %d, v4", i)
        a("v_lshl_add_u32 v%d, v6, 4, v5", vKd + i)
    a("v_lshlrev_b32 v4, 1, v3")
    a("v_xor_b32 v4, v4, v2")
    for i in range(2):
        a("v_xor_b32 v6, %d, v4", 8 * i)
        a("v_lshl_add_u32 v%d, v6, 4, v5", vVd + i)
    a("v_lshlrev_b32 v4, 2, v2")
    a("v_lshrrev_b32 v5, 2, v2")
    a("v_or_b32 v4, v4, v5")
    a("v_and_b32 v4, 15, v4")
    a("v_lshlrev_b32 v5, 2, v3")
    a("v_xor_b32 v4, v4, v5")
    a("v_lshlrev_b32 v5, 8, v2")
    a("v_add_u32 v5, s%d, v5", sLB)
    for s in range(4):
        a("v_xor_b32 v6, %d, v4", s)
        a("v_lshl_add_u32 v%d, v6, 4, v5", vKr + s)
    a("v_lshrrev_b32 v4, 2, v2")
    a("v_lshl_add_u32 v4, v3, 2, v4")
    a("v_and_b32 v5, 3, v2")
    a("v_lshlrev_b32 v5, 3, v5")
    a("v_lshl_add_u32 v5, v4, 8, v5")
    a("v_add_u32 v5, s%d, v5", sLB)
    a("v_and_b32 v4, 7, v4")
    for e in range(8):
        a("v_xor_b32 v6, %d, v4", e)
        a("v_lshl_add_u32 v%d, v6, 5, v5", vVr + e)
    a("v_lshlrev_b32 v4, 10, v2")
    a("v_lshl_add_u32 v%d, v3, 4, v4", vXo)
    a("v_lshlrev_b32 v4, 16, v3")
    a("v_lshl_add_u32 v%d, v2, 4, v4", vWo)
    a("v_lshlrev_b32 v%d, 4, v0", vOo)
    a("s_waitcnt lgkmcnt(0)")
    a("s_cmp_eq_u32 s27, 0")
    for k in range(8):
        a("s_cselect_b32 s%d, s%d, s%d", 4 + k, 4 + k, 12 + k)
    a("s_add_u32 s%d, s4, s30", sX); a("s_addc_u32 s%d, s5, 0", sX + 1); a("s_mov_b32 s%d, 49152", sX + 2); a("s_mov_b32 s%d, 0x20000", sX + 3)
    a("s_add_u32 s%d, s10, s31", sW); a("s_addc_u32 s%d, s11, 0", sW + 1)
    a("s_sub_u32 s%d, 0x400000, s31", sW + 2); a("s_mov_b32 s%d, 0x20000", sW + 3)
    a("s_add_u32 s%d, s6, s28", sK); a("s_addc_u32 s%d, s7, 0", sK + 1); a("s_mov_b32 s%d, 0x40000", sK + 2); a("s_mov_b32 s%d, 0x20000", sK + 3)
    a("s_add_u32 s%d, s8, s28", sV); a("s_addc_u32 s%d, s9, 0", sV + 1); a("s_mov_b32 s%d, 0x40000", sV + 2); a("s_mov_b32 s%d, 0x20000", sV + 3)
    a("s_add_u32 s%d, s20, s32", sO); a("s_addc_u32 s%d, s21, 0", sO + 1); a("s_mov_b32 s%d, 12288", sO + 2); a("s_mov_b32 s%d, 0x20000", sO + 3)

    vm = VM(a)
    def dma_piece(isV, par, i, tile_imm=None, tag=None):
        half, ii = i >> 2, i & 3
        if ii == 0:
            a("s_add_u32 m0, s%d, %d", sLB, par * 16384 + isV * 8192 + half * 4096)
            if tile_imm is None:
                a("s_add_u32 s%d, s%d, %d", sT1, sKV, half * 4096)
            else:
                a("s_mov_b32 s%d, %d", sT1, tile_imm + half * 4096)
        vo = (vVd + (ii & 1)) if isV else (vKd + ii)
        a("buffer_load_dwordx4 v%d, %s, s%d offen offset:%d nt lds", vo, srd(sV if isV else sK), sT1, ii * 1024)
        if tag is not None:
            vm.issue(tag)

    def qload(s):
        buf = s % 3
        for j in range(3):
            a("s_mov_b32 s%d, %d", sWoff, j * 16384)
            a("buffer_load_dwordx4 %s, v%d, %s, s%d offen offset:%d", ar(XF(buf, j)), vXo, srd(sX), sWoff, s * 64)
            vm.issue(("G", s))
        for i in range(8):
            a("s_mov_b32 s%d, %d", sWoff, (32 * s + i) * 8192)
            a("buffer_load_dwordx4 %s, v%d, %s, s%d offen", vr(WR(buf, i)), vWo, srd(sW), sWoff)
            vm.issue(("G", s))
    pre = [(isV, par, i) for par in range(2) for isV in range(2) for i in range(8)]
    for s in range(3):
        qload(s)
    for s in range(16):
        buf = s % 3
        vm.wait(("G", s))
        for e in range(8):
            for jj in range(4):
                a("v_perm_b32 v%d, v%d, v%d, s%d", WT(e) + jj, WR(buf, 2 * jj + 1) + (e >> 1), WR(buf, 2 * jj) + (e >> 1), sSH if e & 1 else sSL)
        a("s_nop 1")
        for e in range(8):
            for j in range(3):
                a("%s %s, %s, %s, %s", MFMA, vr(O(e, j)), vr(WT(e)), ar(XF(buf, j)), "0" if s == 0 else vr(O(e, j)))
        if s + 3 < 16:
            qload(s + 3)
        for k in range(2):
            isV, par, i = pre[2 * s + k]
            half, ii = i >> 2, i & 3
            if k == 0:
                a("s_add_u32 m0, s%d, %d", sLB, par * 16384 + isV * 8192 + half * 4096)
                a("s_mov_b32 s%d, %d", sT1, par * 8192 + half * 4096)
            vo = (vVd + (ii & 1)) if isV else (vKd + ii)
            a("buffer_load_dwordx4 v%d, %s, s%d offen offset:%d nt lds", vo, srd(sV if isV else sK), sT1, ii * 1024)
            vm.issue(("D", par))
    a("s_nop 7")
    a("s_nop 1")
    for j in range(3):
        for s in range(4):
            for k in range(4):
                a("v_cvt_pk_bf16_f32 v%d, v%d, v%d", Q(j, s) + k, O(2 * k, j) + s, O(2 * k + 1, j) + s)
    for r in range(32, 140):
        a("v_mov_b32 v%d, 0", r)
    for k in range(4):
        a("v_mov_b32 v%d, 0x3f803f80", ONES + k)
    for j in range(3):
        a("v_mov_b32 v%d, 0", vM + j)
    a("s_mov_b32 s%d, 16384", sKV)
    a("s_mov_b32 s%d, 0", sCNT)

    if prof:
        stamp(a, 1)
        a("s_mov_b32 s96, 0")
        seg(a, 0)
        for i in range(5):
            a("s_mov_b32 s%d, 0", 78 + 2 * i)
    a.label("K1_loop")
    for par in range(2):
        kb, vb = par * 16384, par * 16384 + 8192
        if prof: seg(a, 0)
        a("s_waitcnt vmcnt(16)")
        if prof: seg(a, 1)
        for t in range(2):
            for s in range(4):
                a("ds_read_b128 %s, v%d offset:%d", ar(KF(t, s)), vKr + s, kb + t * 4096)
        def vread(e):
            for hh in range(2):
                a("ds_read_b64_tr_b16 %s, v%d offset:%d", ar(VF(e) + 2 * hh, 2), vVr + e, vb + hh * 4096)
        for e in range(3):
            vread(e)
        for t in range(2):
            a("s_waitcnt lgkmcnt(%d)", 10 if t == 0 else 4)
            if t == 1:
                for e in range(3, 8):
                    vread(e)
            for s in range(4):
                for j in range(3):
                    a("%s %s, %s, %s, %s", MFMA, vr(S(t, j)), ar(KF(t, s)), vr(Q(j, s)), "0" if s == 0 else vr(S(t, j)))
        a("s_waitcnt lgkmcnt(0)")
        if prof: seg(a, 2)
        for isV in range(2):
            for i in range(8):
                dma_piece(isV, par, i)
        a("s_add_u32 s%d, s%d, 8192", sKV, sKV)
        if prof: seg(a, 3)
        for t in range(2):
            for j in range(3):
                for r in range(4):
                    a("v_fma_f32 v%d, v%d, s%d, -v%d", S(t, j) + r, S(t, j) + r, sC, vM + j)
        regs = [S(t, j) + r for t in range(2) for j in range(3) for r in range(4)]
        a("v_max3_f32 v%d, v%d, v%d, v%d", TMP, regs[0], regs[1], regs[2])
        a("v_max3_f32 v%d, v%d, v%d, v%d", TMP + 1, regs[3], regs[4], regs[5])
        for k in range(6, 24, 4):
            a("v_max3_f32 v%d, v%d, v%d, v%d", TMP, TMP, regs[k], regs[k + 1])
            if k + 2 < 24:
                a("v_max3_f32 v%d, v%d, v%d, v%d", TMP + 1, TMP + 1, regs[k + 2], regs[k + 3])
        a("v_max_f32 v%d, v%d, v%d", TMP, TMP, TMP + 1)
        a("v_cmp_nge_f32 vcc, s%d, v%d", sT, TMP)
        lab = "K1_norescale%d" % par
        a("s_cbranch_vccz %s", lab)
        for j in range(3):
            d = TMP + 2 + j
            a("v_max3_f32 v%d, v%d, v%d, v%d", d, S(0, j), S(0, j) + 1, S(0, j) + 2)
            a("v_max3_f32 v%d, v%d, v%d, v%d", d, d, S(0, j) + 3, S(1, j))
            a("v_max3_f32 v%d, v%d, v%d, v%d", d, d, S(1, j) + 1, S(1, j) + 2)
            a("v_max_f32 v%d, v%d, v%d", d, d, S(1, j) + 3)
        for sw in ("v_permlane32_swap_b32", "v_permlane16_swap_b32"):
            for j in range(3):
                a("v_mov_b32 v%d, v%d", TMP + 5 + j, TMP + 2 + j)
            a("s_nop 1")
            for j in range(3):
                a("%s v%d, v%d", sw, TMP + 2 + j, TMP + 5 + j)
            a("s_nop 1")
            for j in range(3):
                a("v_max_f32 v%d, v%d, v%d", TMP + 2 + j, TMP + 2 + j, TMP + 5 + j)
        for j in range(3):
            d = TMP + 2 + j
            a("v_max_f32 v%d, s%d, v%d", d, sLO, d)
            a("v_add_f32 v%d, v%d, v%d", vM + j, vM + j, d)
            a("v_max_f32 v%d, 0, v%d", TMP + 5 + j, d)
            a("v_exp_f32 v%d, -v%d", TMP + 5 + j, TMP + 5 + j)
        for j in range(3):
            for t in range(2):
                for r in range(4):
                    a("v_sub_f32 v%d, v%d, v%d", S(t, j) + r, S(t, j) + r, TMP + 2 + j)
        for j in range(3):
            for e in range(8):
                for r in range(4):
                    a("v_mul_f32 v%d, v%d, v%d", O(e, j) + r, O(e, j) + r, TMP + 5 + j)
            for r in range(4):
                a("v_mul_f32 v%d, v%d, v%d", L(j) + r, L(j) + r, TMP + 5 + j)
        a("s_mov_b32 s%d, 0x%x", sT, f2u(T))
        a("s_mov_b32 s%d, 0", sLO)
        a.label(lab)
        for t in range(2):
            for j in range(3):
                for r in range(4):
                    a("v_exp_f32 v%d, v%d", S(t, j) + r, S(t, j) + r)
        a("s_nop 0")
        for j in range(3):
            for t in range(2):
                for k in range(2):
                    a("v_cvt_pk_bf16_f32 v%d, v%d, v%d", P(j) + 2 * t + k, S(t, j) + 2 * k, S(t, j) + 2 * k + 1)
        a("s_nop 1")
        if prof: seg(a, 4)
        for e in range(8):
            for j in range(3):
                a("%s %s, %s, %s, %s", MFMA, vr(O(e, j)), ar(VF(e)), vr(P(j)), vr(O(e, j)))
        for j in range(3):
            a("%s %s, %s, %s, %s", MFMA, vr(L(j)), vr(ONES), vr(P(j)), vr(L(j)))
    a("s_add_u32 s%d, s%d, 1", sCNT, sCNT)
    a("s_cmp_lt_u32 s%d, 16", sCNT)
    a("s_cbranch_scc1 K1_loop")
    if prof: stamp(a, 2)
    a("s_nop 7")
    a("s_nop 1")
    for j in range(3):
        a("v_rcp_f32 v%d, v%d", TMP + j, L(j))
    a("s_nop 0")
    for j in range(3):
        for e in range(8):
            for r in range(4):
                a("v_mul_f32 v%d, v%d, v%d", O(e, j) + r, O(e, j) + r, TMP + j)
    for u in range(4):
        for j in range(3):
            d = Q(j, u)
            for t in range(2):
                for k in range(2):
                    a("v_cvt_pk_bf16_f32 v%d, v%d, v%d", d + 2 * t + k, O(2 * u + t, j) + 2 * k, O(2 * u + t, j) + 2 * k + 1)
            off = (u * 3 + j) * 1024
            a("s_mov_b32 s%d, %d", sT1, off)
            a("buffer_store_dwordx4 %s, v%d, %s, s%d offen", vr(d), vOo, srd(sO), sT1)
    a("s_waitcnt vmcnt(0)")
    if prof:
        stamp(a, 3)
        a("s_lshl_b32 s68, s2, 2")
        a("s_add_u32 s68, s68, s22")
        stamp_store(a, 9, 20, None)
    a.label("K1_end")
    a("s_endpgm")


def gen_k2(a, kn):
    kernel_begin(a, kn)
    DEPTH = 4
    ACC = lambda e, j: 16 + (e * 3 + j) * 4
    WT = lambda e: 64 + e * 4
    WR = lambda buf, i: 80 + buf * 16 + i * 2
    OF = lambda buf, j: 144 + buf * 12 + j * 4
    sOo, sW, sOut = 36, 40, 44
    sSL, sSH, sT1 = 48, 49, 50
    vOo, vW0, vW1 = 8, 9, 10
    srd = lambda b: "s[%d:%d]" % (b, b + 3)
    a("s_cmp_ge_u32 s2, 256")
    a("s_cbranch_scc1 K2_end")
    a("s_load_dwordx2 s[4:5], s[0:1], 32")
    a("s_load_dwordx4 s[8:11], s[0:1], 72")
    a("s_load_dwordx2 s[12:13], s[0:1], 96")
    a("v_lshrrev_b32 v1, 6, v0")
    a("v_and_b32 v0, 63, v0")
    a("v_readfirstlane_b32 s22, v1")
    a("v_and_b32 v2, 15, v0")
    a("v_lshrrev_b32 v3, 4, v0")
    a("s_and_b32 s23, s2, 7")
    a("s_lshr_b32 s24, s23, 2")
    a("s_lshr_b32 s25, s2, 3")
    a("s_lshr_b32 s26, s25, 2")
    a("s_and_b32 s27, s23, 2")
    a("s_lshl_b32 s27, s27, 2")
    a("s_add_u32 s26, s26, s27")
    a("s_and_b32 s27, s23, 1")
    a("s_lshl_b32 s27, s27, 2")
    a("s_and_b32 s28, s25, 3")
    a("s_add_u32 s27, s27, s28")
    a("s_lshl_b32 s28, s24, 4")
    a("s_add_u32 s28, s28, s26")
    a("s_lshl_b32 s28, s28, 5")
    a("s_lshl_b32 s29, s22, 2")
    a("s_add_u32 s28, s28, s29")
    a("s_mul_i32 s28, s28, 12288")
    a("s_lshl_b32 s29, s22, 19")
    a("s_lshl_b32 s30, s27, 7")
    a("s_add_u32 s29, s29, s30")
    a("s_mov_b32 s%d, 0x05040100", sSL)
    a("s_mov_b32 s%d, 0x07060302", sSH)
    a("v_lshlrev_b32 v%d, 4, v0", vOo)
    a("v_lshlrev_b32 v4, 12, v3")
    a("v_lshl_add_u32 v%d, v2, 3, v4", vW0)
    a("v_add_u32 v%d, 0x4000, v%d", vW1, vW0)
    a("s_waitcnt lgkmcnt(0)")
    a("s_cmp_eq_u32 s24, 0")
    a("s_cselect_b32 s4, s4, s8")
    a("s_cselect_b32 s5, s5, s9")
    a("s_add_u32 s%d, s12, s28", sOo); a("s_addc_u32 s%d, s13, 0", sOo + 1); a("s_mov_b32 s%d, 49152", sOo + 2); a("s_mov_b32 s%d, 0x20000", sOo + 3)
    a("s_add_u32 s%d, s4, s29", sW); a("s_addc_u32 s%d, s5, 0", sW + 1)
    a("s_sub_u32 s%d, 0x400000, s29", sW + 2); a("s_mov_b32 s%d, 0x20000", sW + 3)
    a("s_mov_b32 s%d, s10", sOut); a("s_mov_b32 s%d, s11", sOut + 1); a("s_mov_b32 s%d, %d", sOut + 2, 16 * 48 * 1024 * 2); a("s_mov_b32 s%d, 0x20000", sOut + 3)
    vm = VM(a)
    def load(s):
        buf = s % DEPTH
        a("s_mov_b32 s%d, %d", sT1, s * 3072)
        for j in range(3):
            a("buffer_load_dwordx4 %s, v%d, %s, s%d offen offset:%d", vr(OF(buf, j)), vOo, srd(sOo), sT1, j * 1024)
            vm.issue(s)
        a("s_mov_b32 s%d, %d", sT1, s * 32768)
        for i in range(8):
            a("buffer_load_dwordx2 %s, v%d, %s, s%d offen offset:%d", vr(WR(buf, i), 2), vW1 if i >= 4 else vW0, srd(sW), sT1, (i & 3) * 1024)
            vm.issue(s)
    for s in range(DEPTH):
        load(s)
    for s in range(16):
        buf = s % DEPTH
        vm.wait(s)
        for e in range(4):
            for jj in range(4):
                a("v_perm_b32 v%d, v%d, v%d, s%d", WT(e) + jj, WR(buf, 2 * jj + 1) + (e >> 1), WR(buf, 2 * jj) + (e >> 1), sSH if e & 1 else sSL)
        a("s_nop 1")
        for e in range(4):
            for j in range(3):
                a("%s %s, %s, %s, %s", MFMA, vr(ACC(e, j)), vr(WT(e)), vr(OF(buf, j)), "0" if s == 0 else vr(ACC(e, j)))
        if s + DEPTH < 16:
            load(s + DEPTH)
    a("s_nop 7")
    a("s_nop 1")
    a("s_mul_i32 s30, s22, 12288")
    a("v_add_u32 v4, s30, v%d", vOo)
    for e in range(4):
        for j in range(3):
            a("ds_write_b128 v4, %s offset:%d", vr(ACC(e, j)), (e * 3 + j) * 1024)
    a("s_waitcnt lgkmcnt(0)")
    a("s_barrier")
    a("s_cmp_ge_u32 s22, 6")
    a("s_cbranch_scc1 K2_end")
    a("s_lshr_b32 s30, s22, 1")
    a("s_and_b32 s31, s22, 1")
    a("s_lshl_b32 s32, s30, 10")
    a("s_lshl_b32 s33, s31, 3")
    a("s_add_u32 s32, s32, s33")
    a("v_add_u32 v4, s32, v%d", vOo)
    a("v_add_u32 v5, 0xc000, v4")
    R = lambda w, e: 64 + (w * 4 + e) * 2
    for w in range(8):
        for e in range(4):
            a("ds_read_b64 %s, v%d offset:%d", vr(R(w, e), 2), 4 if w < 4 else 5, (w & 3) * 12288 + e * 3072)
        if w & 1:
            a("s_waitcnt lgkmcnt(4)")
    a("s_waitcnt lgkmcnt(0)")
    for w in range(1, 8):
        for e in range(4):
            for r in range(2):
                a("v_add_f32 v%d, v%d, v%d", R(0, e) + r, R(0, e) + r, R(w, e) + r)
    for r in range(2):
        for k in range(2):
            a("v_cvt_pk_bf16_f32 v%d, v%d, v%d", 16 + r * 2 + k, R(0, 2 * k) + r, R(0, 2 * k + 1) + r)
    a("s_mul_i32 s32, s26, 48")
    a("s_lshl_b32 s33, s30, 4")
    a("s_add_u32 s32, s32, s33")
    a("s_lshl_b32 s32, s32, 11")
    a("s_lshl_b32 s33, s24, 10")
    a("s_add_u32 s32, s32, s33")
    a("s_lshl_b32 s33, s27, 7")
    a("s_add_u32 s32, s32, s33")
    a("s_lshl_b32 s33, s31, 4")
    a("s_add_u32 s32, s32, s33")
    a("v_lshlrev_b32 v4, 11, v2")
    a("v_lshl_add_u32 v4, v3, 5, v4")
    a("buffer_store_dwordx4 v[16:19], v4, %s, s32 offen", srd(sOut))
    a("s_waitcnt vmcnt(0)")
    a.label("K2_end")
    a("s_endpgm")


def main(fname):
    a = Asm()
    gen_k1(a, "attn_kernel")
    gen_k2(a, "oproj_kernel")
    txt = full_file([("attn_kernel", (256, 1, 1), (256, 1, 1), 131072), ("oproj_kernel", (256, 1, 1), (512, 1, 1), 98304)],
                    a.text(), [kernel_desc("attn_kernel", 256 + 100, accum=256), kernel_desc("oproj_kernel", 192)])
    open(fname, "w").write(txt)

if __name__ == "__main__":
    main(sys.argv[1] if len(sys.argv) > 1 else "v1.s")
```

```python
import sys, math, struct
from asmgen import *
from hz import HAsm
from gen_v1 import f2u, vr, MFMA

PRIO = dict(kv=3, att=1, g0=2, g1=0)
PWS = 0x0
NKV = 10
MAIL, SCR = 1024, 1024 + 24576
KV0 = SCR + 49152
LDS_TOTAL = KV0 + NKV * 8192
C_KVR, C_KVD, C_G, C_A, C_BAR = 0, 16, 32, 36, 40
srd = lambda b: "s[%d:%d]" % (b, b + 3)

vL16, vZero, vPoll, vVal, vJ4 = 1, 2, 3, 4, 5
sWV, sX, sI, sJ, sB, sS2, sORD, sH0 = 22, 23, 24, 25, 26, 27, 28, 29
sT1, sT2 = 30, 31


def poll(a, sreg, vaddr, off, cond_reg_or_imm, tag, sleep=1):
    l0, l1 = a.newlabel("L_p"), a.newlabel("L_q")
    a("s_cmp_gt_u32 s%d, %s", sreg, cond_reg_or_imm)
    a("s_cbranch_scc1 %s", l1)
    a.label(l0)
    a("ds_read_b32 v%d, v%d offset:%d", vPoll, vaddr, off)
    a("s_waitcnt lgkmcnt(0)")
    a("v_readfirstlane_b32 s%d, v%d", sreg, vPoll)
    a("s_cmp_gt_u32 s%d, %s", sreg, cond_reg_or_imm)
    a("s_cbranch_scc1 %s", l1)
    a("s_sleep %d", sleep)
    a("s_branch %s", l0)
    a.label(l1)

def post(a, vaddr, off, val):
    a("v_mov_b32 v%d, %s", vVal, val)
    a("ds_write_b32 v%d, v%d offset:%d", vaddr, vVal, off)


vKr, vVr, vM = 8, 12, 20
O = lambda e, j: 24 + (e * 2 + j) * 4
L = lambda j: 88 + j * 4
S = lambda p, t, j: 96 + p * 16 + (t * 2 + j) * 4
Q = lambda j, s: 128 + (j * 4 + s) * 4
ONES = 160
KF = lambda k: 164 + k * 4
VF = lambda e: 196 + e * 4
P = lambda j: 228 + j * 4
TMP = 236
sC, sT, sLO, sCNT, sRDY, sU, sKS, sVS, sD, sEARLY, sMS, sJOB, sMB, sD2 = 40, 41, 42, 43, 44, 45, 46, 47, 48, 49, 50, 51, 52, 53

def kread(k): return "ds_read_b128 %s, v%d offset:%d" % (vr(KF(k)), vKr + (k & 3), (k >> 2) * 4096)
def vread(e): return ["ds_read_b64_tr_b16 %s, v%d offset:%d" % (vr(VF(e) + 2 * hh, 2), vVr + e, hh * 4096) for hh in range(2)]
def step_s(sreg, sd):
    return ["s_add_u32 s%d, s%d, 16384" % (sreg, sreg), "s_cmp_ge_u32 s%d, %d" % (sreg, NKV * 8192), "s_cselect_b32 s%d, %d, 0" % (sd, NKV * 8192),
            "s_sub_u32 s%d, s%d, s%d" % (sreg, sreg, sd), "s_sub_u32 s%d, 16384, s%d" % (sd, sd)]
def step_v(sd, regs_): return ["v_add_u32 v%d, s%d, v%d" % (r, sd, r) for r in regs_]

def weave(a, mf, fill):
    n = len(mf); k = 0
    for i, m in enumerate(mf):
        a(m)
        tgt = (len(fill) * (i + 1)) // n
        while k < tgt:
            a(fill[k]); k += 1

def att_job(a, J, T):
    tag = "J%d" % J
    js = range(J)
    def smf(p): return ["%s %s, %s, %s, %s" % (MFMA, vr(S(p, k >> 2, j)), vr(KF(k)), vr(Q(j, k & 3)), "0" if (k & 3) == 0 else vr(S(p, k >> 2, j)))
                        for k in (0, 4, 1, 5, 2, 6, 3, 7) for j in js]
    def pvf(): return ["%s %s, %s, %s, %s" % (MFMA, vr(O(e, j)), vr(VF(e)), vr(P(j)), vr(O(e, j))) for e in range(8) for j in js] + \
                      ["%s %s, %s, %s, %s" % (MFMA, vr(L(j)), vr(ONES), vr(P(j)), vr(L(j))) for j in js]
    def rs(p): return [S(p, t, j) + r for j in js for t in range(2) for r in range(4)]
    def expcvt(p):
        out = []
        for j in js:
            out += ["v_exp_f32 v%d, v%d" % (S(p, t, j) + r, S(p, t, j) + r) for t in range(2) for r in range(4)]
        for j in js:
            out += ["v_cvt_pk_bf16_f32 v%d, v%d, v%d" % (P(j) + 2 * t + k, S(p, t, j) + 2 * k, S(p, t, j) + 2 * k + 1) for t in range(2) for k in range(2)]
        return out
    def fmamax(p):
        out = ["v_fma_f32 v%d, v%d, s%d, -v%d" % (S(p, t, j) + r, S(p, t, j) + r, sC, vM + j) for j in js for t in range(2) for r in range(4)]
        r = rs(p)
        out.append("v_max3_f32 v%d, v%d, v%d, v%d" % (TMP, r[0], r[1], r[2]))
        k = 3
        while k + 1 < len(r):
            out.append("v_max3_f32 v%d, v%d, v%d, v%d" % (TMP, TMP, r[k], r[k + 1])); k += 2
        out.append("v_max_f32 v%d, v%d, v%d" % (TMP, TMP, r[k]))
        return out
    def rescale(p):
        for j in js:
            d = TMP + j
            a("v_max3_f32 v%d, v%d, v%d, v%d", d, S(p, 0, j), S(p, 0, j) + 1, S(p, 0, j) + 2)
            a("v_max3_f32 v%d, v%d, v%d, v%d", d, d, S(p, 0, j) + 3, S(p, 1, j))
            a("v_max3_f32 v%d, v%d, v%d, v%d", d, d, S(p, 1, j) + 1, S(p, 1, j) + 2)
            a("v_max_f32 v%d, v%d, v%d", d, d, S(p, 1, j) + 3)
        for sw in ("v_permlane32_swap_b32", "v_permlane16_swap_b32"):
            for j in js: a("v_mov_b32 v%d, v%d", TMP + 2 + j, TMP + j)
            for j in js: a("%s v%d, v%d", sw, TMP + j, TMP + 2 + j)
            a("s_nop 1")
            for j in js: a("v_max_f32 v%d, v%d, v%d", TMP + j, TMP + j, TMP + 2 + j)
        for j in js:
            d = TMP + j
            a("v_max_f32 v%d, s%d, v%d", d, sLO, d)
            a("v_add_f32 v%d, v%d, v%d", vM + j, vM + j, d)
            a("v_max_f32 v%d, 0, v%d", TMP + 2 + j, d)
            a("v_exp_f32 v%d, -v%d", TMP + 2 + j, TMP + 2 + j)
        for j in js:
            for t in range(2):
                for r in range(4):
                    a("v_sub_f32 v%d, v%d, v%d", S(p, t, j) + r, S(p, t, j) + r, TMP + j)
        for j in js:
            for e in range(8):
                for r in range(4):
                    a("v_mul_f32 v%d, v%d, v%d", O(e, j) + r, O(e, j) + r, TMP + 2 + j)
            for r in range(4):
                a("v_mul_f32 v%d, v%d, v%d", L(j) + r, L(j) + r, TMP + 2 + j)
        a("s_mov_b32 s%d, 0x%x", sT, f2u(T))
        a("s_mov_b32 s%d, 0", sLO)
    rares = []
    def check(p, t):
        a("v_cmp_nge_f32 vcc, s%d, v%d", sT, TMP)
        a("s_cbranch_vccnz L_rr_%s%s", tag, t)
        a.label("L_rj_%s%s" % (tag, t))
        def rare():
            a.label("L_rr_%s%s" % (tag, t))
            a("s_nop 7")
            rescale(p)
            a("s_branch L_rj_%s%s", tag, t)
        rares.append(rare)
    vall = [s_ for e in range(8) for s_ in vread(e)]
    kall = [kread(k) for k in (0, 4, 1, 5, 2, 6, 3, 7)]
    def X(p, first=False):
        a("s_waitcnt lgkmcnt(0)")
        if first:
            weave(a, smf(p), [])
            return
        ec = expcvt(1 - p)
        va = step_v(sD2, range(vVr, vVr + 8))
        for s_ in step_s(sVS, sD2): a(s_)
        for s_ in vall[:8]: a(s_)
        m = smf(p)
        h = len(m) // 2
        weave(a, m[:h], ec[:len(ec) // 2] + va[:4])
        a("s_waitcnt lgkmcnt(6)")
        for s_ in vall[8:]: a(s_)
        weave(a, m[h:], ec[len(ec) // 2:] + va[4:])
    def Y(p, t, first=False, last=False):
        fm = fmamax(p)
        if not first:
            a("s_add_u32 s%d, s%d, 1", sT1, sU)
            a("s_waitcnt lgkmcnt(0)")
            post(a, vJ4, C_KVD, "s%d" % sT1)
        if not last:
            a("s_add_u32 s%d, s%d, 2", sU, sU)
            poll(a, sRDY, vZero, C_KVR, "s%d" % sU, tag)
            for s_ in step_s(sKS, sD): a(s_)
        else:
            a("s_add_u32 s%d, s%d, 1", sU, sU)
            poll(a, sRDY, vZero, C_KVR, "s%d" % sU, tag)
            a("s_add_u32 s%d, s%d, 1", sU, sU)
        if first:
            for s_ in kall + step_v(sD, range(vKr, vKr + 4)) + fm: a(s_)
        else:
            if not last:
                for s_ in kall: a(s_)
                a("ds_read_b32 v%d, v%d offset:%d", vPoll, vZero, C_KVR)
            weave(a, pvf(), ([] if last else step_v(sD, range(vKr, vKr + 4))) + fm)
            if not last:
                a("s_waitcnt lgkmcnt(0)")
                a("v_readfirstlane_b32 s%d, v%d", sRDY, vPoll)
        check(p, t)

    for e in range(8):
        for j in js:
            for r in range(4): a("v_mov_b32 v%d, 0", O(e, j) + r)
    for j in js:
        for r in range(4): a("v_mov_b32 v%d, 0", L(j) + r)
        a("v_mov_b32 v%d, 0", vM + j)
    a("s_mov_b32 s%d, 0xff800000", sT)
    a("s_mov_b32 s%d, 0xff7fffff", sLO)
    a("s_mov_b32 s%d, 0", sCNT)
    poll(a, sRDY, vZero, C_KVR, "s%d" % sU, tag)
    for s_ in step_s(sKS, sD) + kall + step_v(sD, range(vKr, vKr + 4)): a(s_)
    X(0, first=True); Y(0, "a", first=True)
    a.label("L_att_" + tag)
    X(1); Y(1, "b")
    X(0); Y(0, "c")
    a("s_add_u32 s%d, s%d, 1", sCNT, sCNT)
    a("s_cmp_lt_u32 s%d, 15", sCNT)
    a("s_cbranch_scc1 L_att_%s", tag)
    X(1); Y(1, "d", last=True)
    for s_ in step_s(sVS, sD2) + vall[:14] + expcvt(1): a(s_)
    a("s_waitcnt lgkmcnt(6)")
    for s_ in vall[14:] + step_v(sD2, range(vVr, vVr + 8)): a(s_)
    a("s_waitcnt lgkmcnt(0)")
    post(a, vJ4, C_KVD, "s%d" % sU)
    for s_ in pvf(): a(s_)
    for j in js:
        a("v_rcp_f32 v%d, v%d", TMP + j, L(j))
    for j in js:
        for e in range(8):
            for r in range(4):
                a("v_mul_f32 v%d, v%d, v%d", O(e, j) + r, O(e, j) + r, TMP + j)
    for j in js:
        for u in range(4):
            d = KF(0) + (j * 4 + u) * 4
            for t in range(2):
                for k in range(2):
                    a("v_cvt_pk_bf16_f32 v%d, v%d, v%d", d + 2 * t + k, O(2 * u + t, j) + 2 * k, O(2 * u + t, j) + 2 * k + 1)
    return rares


def arrive(a, off):
    a("s_waitcnt lgkmcnt(0)")
    a("v_mov_b32 v%d, 1", vVal)
    a("s_mov_b64 exec, 1")
    a("ds_add_u32 v%d, v%d offset:%d", vZero, vVal, off)
    a("s_mov_b64 exec, -1")

def gen_att(a, T, prof):
    a.label("R_att")
    a("s_setprio %d", PRIO["att"])
    a("s_mov_b32 s%d, 0x%x", sC, f2u(128 ** -0.5 * math.log2(math.e)))
    a("v_and_b32 v244, 15, v0")
    a("v_lshrrev_b32 v245, 4, v0")
    a("v_and_b32 v246, 7, v244")
    a("v_lshlrev_b32 v246, 1, v246")
    a("v_xor_b32 v246, v246, v245")
    a("v_lshlrev_b32 v247, 8, v244")
    a("v_add_u32 v247, 0x%x, v247", KV0)
    for s in range(4):
        a("v_xor_b32 v248, %d, v246", 4 * s)
        a("v_lshl_add_u32 v%d, v248, 4, v247", vKr + s)
    a("v_lshrrev_b32 v246, 2, v244")
    a("v_lshl_add_u32 v246, v245, 2, v246")
    a("v_and_b32 v247, 3, v244")
    a("v_lshlrev_b32 v247, 3, v247")
    a("v_lshl_add_u32 v247, v246, 8, v247")
    a("v_add_u32 v247, 0x%x, v247", KV0 + 8192)
    a("v_and_b32 v246, 7, v246")
    for e in range(8):
        a("v_xor_b32 v248, %d, v246", e)
        a("v_lshl_add_u32 v%d, v248, 5, v247", vVr + e)
    for k in range(4):
        a("v_mov_b32 v%d, 0x3f803f80", ONES + k)
    a("s_lshl_b32 s%d, s%d, 12", sMB, sJ)
    a("v_add_u32 v6, s%d, v%d", sMB, vL16)
    a("s_mov_b32 s%d, 0", sRDY)
    a("s_mov_b32 s%d, 0", sU)
    a("s_mov_b32 s%d, 0", sKS)
    a("s_mov_b32 s%d, 8192", sVS)
    a("s_mov_b32 s%d, 0", sMS)
    a("s_mov_b32 s%d, 0", sJOB)
    def qread():
        for f in range(8):
            a("ds_read_b128 %s, v6 offset:%d", vr(Q(0, 0) + 4 * f), MAIL + (f >> 2) * 12288 + (f & 3) * 1024)
    poll(a, sMS, vZero, C_G, "3", "m", sleep=2)
    qread()
    arrive(a, C_A)
    if prof: pstamp(a, 1)
    a.label("L_job")
    a("s_cmp_eq_u32 s%d, s%d", sJOB, sORD)
    a("s_cbranch_scc1 L_jobA")
    rares = att_job(a, 1, T)
    a("s_cmp_eq_u32 s%d, 2", sJOB)
    a("s_cselect_b32 s%d, %d, 0", sT1, 12288)
    a("s_add_u32 s%d, s%d, %d", sEARLY, sT1, 2 * 12288)
    a("s_branch L_jobdone")
    a.label("L_jobA")
    rares += att_job(a, 2, T)
    a("s_mov_b32 s%d, 0", sEARLY)
    a.label("L_jobdone")
    if prof:
        a("s_add_u32 s%d, s%d, 2", sT1, sJOB)
        pstamp(a, None, sT1)
    a("s_cmp_eq_u32 s%d, 2", sJOB)
    a("s_cbranch_scc1 L_noq")
    a("s_lshl_b32 s%d, s%d, 2", sT1, sJOB)
    a("s_add_u32 s%d, s%d, 7", sT1, sT1)
    poll(a, sMS, vZero, C_G, "s%d" % sT1, "m2")
    qread()
    a.label("L_noq")
    a("v_add_u32 v7, s%d, v6", sEARLY)
    for f in range(4):
        a("ds_write_b128 v7, %s offset:%d", vr(KF(0) + 4 * f), SCR + f * 1024)
    a("s_cmp_lg_u32 s%d, s%d", sJOB, sORD)
    a("s_cbranch_scc1 L_o1")
    for f in range(4):
        a("ds_write_b128 v7, %s offset:%d", vr(KF(4) + 4 * f), SCR + 12288 + f * 1024)
    a.label("L_o1")
    arrive(a, C_A)
    a("s_add_u32 s%d, s%d, 1", sJOB, sJOB)
    a("s_cmp_lt_u32 s%d, 3", sJOB)
    a("s_cbranch_scc1 L_job")
    a("s_waitcnt lgkmcnt(0)")
    a("s_branch K_end")
    for r in rares: r()


sIS, sPUB, sMIN, sSL, sOUT = 40, 41, 42, 43, 44
sA, sBd = 48, 52
sDS = 60

def loader_loop(a, tag, total, N, D, c_ready, c_done, issue):
    a("s_mov_b32 s%d, 0", sIS); a("s_mov_b32 s%d, 0", sPUB); a("s_mov_b32 s%d, 0", sMIN)
    a.label("L_ld_" + tag)
    a("s_sub_u32 s%d, s%d, s%d", sOUT, sIS, sPUB)
    a("s_cmp_ge_u32 s%d, %d", sIS, total)
    a("s_cbranch_scc1 L_lw_%s", tag)
    a("s_cmp_ge_u32 s%d, %d", sOUT, D)
    a("s_cbranch_scc1 L_lw_%s", tag)
    a("s_sub_u32 s%d, s%d, s%d", sT1, sIS, sMIN)
    a("s_cmp_lt_u32 s%d, %d", sT1, N)
    a("s_cbranch_scc1 L_li_%s", tag)
    a("ds_read_b128 v[8:11], v%d offset:%d", vZero, c_done)
    a("s_waitcnt lgkmcnt(0)")
    a("v_min_u32 v8, v8, v9")
    a("v_min_u32 v8, v8, v10")
    a("v_readfirstlane_b32 s%d, v8", sMIN)
    a("s_sub_u32 s%d, s%d, s%d", sT1, sIS, sMIN)
    a("s_cmp_lt_u32 s%d, %d", sT1, N)
    a("s_cbranch_scc0 L_lw_%s", tag)
    a.label("L_li_" + tag)
    issue()
    a("s_add_u32 s%d, s%d, 1", sIS, sIS)
    a("s_branch L_ld_%s", tag)
    a.label("L_lw_" + tag)
    a("s_cmp_eq_u32 s%d, 0", sOUT)
    a("s_cbranch_scc0 L_lp_%s", tag)
    a("s_cmp_ge_u32 s%d, %d", sIS, total)
    a("s_cbranch_scc1 K_end")
    a("s_sleep 1")
    a("s_branch L_ld_%s", tag)
    a.label("L_lp_" + tag)
    for k in range(D, 0, -1):
        if k > 1:
            a("s_cmp_lt_u32 s%d, %d", sOUT, k)
            a("s_cbranch_scc1 L_lk%d_%s", k, tag)
        a("s_waitcnt vmcnt(%d)", 8 * (k - 1))
        if k > 1:
            a("s_branch L_lq_%s", tag)
            a.label("L_lk%d_%s" % (k, tag))
    a.label("L_lq_" + tag)
    a("s_add_u32 s%d, s%d, 1", sPUB, sPUB)
    post(a, vZero, c_ready, "s%d" % sPUB)
    a("s_branch L_ld_%s", tag)

def swz_voff(a, dst, shift):
    a("v_and_b32 v20, 15, v0")
    a("v_lshrrev_b32 v21, 4, v0")
    a("v_lshlrev_b32 v22, %d, v21", shift)
    a("v_lshlrev_b32 v23, 1, v21")
    a("v_xor_b32 v23, v23, v20")
    for i in range(2):
        a("v_xor_b32 v24, %d, v23", 8 * i)
        a("v_lshl_add_u32 v%d, v24, 4, v22", dst + i)

def gen_kvload(a, nomem):
    a.label("R_kv")
    a("s_setprio %d", PRIO["kv"])
    swz_voff(a, 12, 8)
    a("s_lshl_b32 s%d, s%d, 3", sT1, sB)
    a("s_add_u32 s%d, s%d, s%d", sT1, sT1, sX)
    a("s_lshl_b32 s%d, s%d, 18", sT1, sT1)
    a("s_lshl_b32 s%d, s%d, 5", sT2, sB)
    a("s_add_u32 s%d, s%d, s%d", sT2, sT2, sH0)
    a("s_lshl_b32 s%d, s%d, 18", sT2, sT2)
    a("s_add_u32 s%d, s6, s%d", sDS, sT1); a("s_addc_u32 s%d, s7, 0", sDS + 1)
    a("s_add_u32 s%d, s8, s%d", sDS + 2, sT1); a("s_addc_u32 s%d, s9, 0", sDS + 3)
    a("s_add_u32 s%d, s74, s%d", sDS + 4, sT2); a("s_addc_u32 s%d, s75, 0", sDS + 5)
    a("s_add_u32 s%d, s76, s%d", sDS + 6, sT2); a("s_addc_u32 s%d, s77, 0", sDS + 7)
    a("s_add_u32 s%d, s%d, 0x40000", sDS + 8, sDS + 4); a("s_addc_u32 s%d, s%d, 0", sDS + 9, sDS + 5)
    a("s_add_u32 s%d, s%d, 0x40000", sDS + 10, sDS + 6); a("s_addc_u32 s%d, s%d, 0", sDS + 11, sDS + 7)
    a("s_cmp_eq_u32 s%d, 0", sORD)
    a("s_cbranch_scc1 L_kv0")
    for k in (0, 2):
        a("s_mov_b64 s[32:33], s[%d:%d]", sDS + k, sDS + k + 1)
        a("s_mov_b64 s[%d:%d], s[%d:%d]", sDS + k, sDS + k + 1, sDS + 4 + k, sDS + 5 + k)
        a("s_mov_b64 s[%d:%d], s[32:33]", sDS + 4 + k, sDS + 5 + k)
    a.label("L_kv0")
    a("s_mov_b32 s%d, %d", sA + 2, 0 if nomem else 0x40000); a("s_mov_b32 s%d, 0x20000", sA + 3)
    a("s_mov_b32 s%d, %d", sSL, KV0)
    def issue():
        a("s_and_b32 s%d, s%d, 1", sT1, sIS)
        a("s_cselect_b32 s%d, s%d, s%d", sA, sDS + 2, sDS)
        a("s_cselect_b32 s%d, s%d, s%d", sA + 1, sDS + 3, sDS + 1)
        a("s_and_b32 s%d, s%d, 62", sT1, sIS)
        a("s_lshl_b32 s%d, s%d, 12", sT1, sT1)
        for half in range(2):
            a("s_add_u32 m0, s%d, %d", sSL, half * 4096)
            if half: a("s_add_u32 s%d, s%d, 4096", sT1, sT1)
            else: a("s_nop 0")
            for i in range(4):
                a("buffer_load_dwordx4 v%d, %s, s%d offen offset:%d nt lds", 12 + (i & 1), srd(sA), sT1, i * 1024)
        a("s_add_u32 s%d, s%d, 8192", sSL, sSL)
        a("s_cmp_ge_u32 s%d, %d", sSL, LDS_TOTAL)
        a("s_cselect_b32 s%d, %d, s%d", sSL, KV0, sSL)
        a("s_and_b32 s%d, s%d, 63", sT1, sIS)
        a("s_cmp_lg_u32 s%d, 63", sT1)
        a("s_cbranch_scc1 L_kvn")
        for k in range(0, 8, 2):
            a("s_mov_b64 s[%d:%d], s[%d:%d]", sDS + k, sDS + k + 1, sDS + 4 + k, sDS + 5 + k)
        a.label("L_kvn")
    loader_loop(a, "kv", 192, NKV, 7, C_KVR, C_KVD, issue)

BF = lambda j: 8 + 4 * j
vXr = 20
AC = lambda e, j: 24 + (e * 3 + j) * 4
WR = lambda s, i: 120 + s * 32 + i * 4
WT = 248
vWq, vWo, vXd0, vXd1 = 5, 6, 7, 0
sBT, sRET, sXs, sPs, sZ, sMG, sWs, sSL_, sSH_, sQB, sWO = 40, 42, 44, 48, 52, 53, 56, 54, 55, 41, 60
RCV = lambda k: 120 + 4 * k

def gbar(a):
    arrive(a, C_BAR)
    a("s_add_u32 s%d, s%d, 4", sBT, sBT)
    lab = a.newlabel("L_gb")
    a.label(lab)
    a("ds_read_b32 v%d, v%d offset:%d", vPoll, vZero, C_BAR)
    a("s_waitcnt lgkmcnt(0)")
    a("v_readfirstlane_b32 s%d, v%d", sT2, vPoll)
    a("s_cmp_ge_u32 s%d, s%d", sT2, sBT)
    a("s_cbranch_scc0 %s", lab)

def kstep(a, s, first):
    for e in range(8):
        wt = WT + (e & 1) * 4
        for jj in range(4):
            a("v_perm_b32 v%d, v%d, v%d, s%d", wt + jj, WR(s, 2 * jj + 1) + (e >> 1), WR(s, 2 * jj) + (e >> 1), sSH_ if e & 1 else sSL_)
        if e == 0:
            a("s_waitcnt lgkmcnt(0)")
        for j in range(3):
            a("%s %s, %s, %s, %s", MFMA, vr(AC(e, j)), vr(wt), vr(BF(j)), "0" if first else vr(AC(e, j)))

def gen_gemm(a, prof, wflags, pflags):
    a.label("S_q")
    for j in range(3):
        a("s_add_u32 m0, s%d, %d", sQB, j * 4096)
        for i in range(4):
            a("s_mov_b32 s%d, %d", sT1, 16384 * j + 3072 * i)
            a("buffer_load_dwordx4 v%d, %s, s%d offen offset:%d%s lds", vXd1 if i & 1 else vXd0, srd(sXs), sT1, i * 1024, wflags)
    a("s_mov_b32 s%d, s%d", sT1, sWO)
    for s in range(4):
        for i in range(8):
            a("buffer_load_dwordx4 %s, v%d, %s, s%d offen%s", vr(WR(s, i)), vWq, srd(sWs), sT1, wflags)
            a("s_add_u32 s%d, s%d, %d", sT1, sT1, 8192 if i < 7 else 25 * 8192)
    for s in range(4):
        a("s_waitcnt vmcnt(%d)", (3 - s) * 8)
        for j in range(3):
            a("ds_read_b128 %s, v%d offset:%d", vr(BF(j)), vXr + s, j * 4096)
        kstep(a, s, s == 0)
    a("v_add_u32 v%d, s%d, v%d", WT, sQB, vL16)
    for k, x in ((1, 2), (2, 3)):
        a("s_xor_b32 s%d, s%d, %d", sT1, sJ, x)
        a("s_mul_i32 s%d, s%d, 12288", sT1, sT1)
        a("s_add_u32 s%d, s%d, %d", sT1, sT1, SCR)
        a("v_add_u32 v%d, s%d, v%d", WT + k, sT1, vL16)
    a.fence()
    a("s_and_b32 s%d, s%d, 2", sT1, sJ)
    a("s_cbranch_scc1 L_r1b")
    for k in range(12):
        a("ds_write_b128 v%d, %s offset:%d", WT, vr(AC(4, 0) + 4 * k), k * 1024)
    a("s_branch L_r1c")
    a.label("L_r1b")
    for k in range(12):
        a("ds_write_b128 v%d, %s offset:%d", WT, vr(AC(0, 0) + 4 * k), k * 1024)
    a("s_waitcnt lgkmcnt(0)")
    for k in range(48):
        a("v_mov_b32 v%d, v%d", AC(0, 0) + k, AC(4, 0) + k)
    a.label("L_r1c")
    gbar(a)
    for k in range(12):
        a("ds_read_b128 %s, v%d offset:%d", vr(RCV(k)), WT + 1, k * 1024)
    for k in range(12):
        a("s_waitcnt lgkmcnt(%d)", 11 - k)
        for r in range(4):
            a("v_add_f32 v%d, v%d, v%d", AC(0, 0) + 4 * k + r, AC(0, 0) + 4 * k + r, RCV(k) + r)
    a("s_and_b32 s%d, s%d, 1", sT1, sJ)
    a("s_cbranch_scc1 L_r2b")
    for k in range(6):
        a("ds_write_b128 v%d, %s offset:%d", WT + 1, vr(AC(2, 0) + 4 * k), k * 1024)
    a("s_branch L_r2c")
    a.label("L_r2b")
    for k in range(6):
        a("ds_write_b128 v%d, %s offset:%d", WT + 1, vr(AC(0, 0) + 4 * k), k * 1024)
    a("s_waitcnt lgkmcnt(0)")
    for k in range(24):
        a("v_mov_b32 v%d, v%d", AC(0, 0) + k, AC(2, 0) + k)
    a.label("L_r2c")
    gbar(a)
    for k in range(6):
        a("ds_read_b128 %s, v%d offset:%d", vr(RCV(k)), WT + 2, k * 1024)
    for k in range(6):
        a("s_waitcnt lgkmcnt(%d)", 5 - k)
        for r in range(4):
            a("v_add_f32 v%d, v%d, v%d", AC(0, 0) + 4 * k + r, AC(0, 0) + 4 * k + r, RCV(k) + r)
    for j in range(3):
        for r in range(4):
            a("v_cvt_pk_bf16_f32 v%d, v%d, v%d", 72 + j * 4 + r, AC(0, j) + r, AC(1, j) + r)
    gbar(a)
    a("s_setpc_b64 s[%d:%d]", sRET, sRET + 1)

    a.label("S_w")
    for u in range(4):
        for h in range(2):
            a("s_add_u32 s%d, s%d, %d", sT1, sWO, u * 32768 + h * 16384)
            for i in range(4):
                a("buffer_load_dwordx4 %s, v%d, %s, s%d offen offset:%d%s", vr(WR(u, 4 * h + i)), vWo, srd(sWs), sT1, i * 1024, wflags)
    a("s_setpc_b64 s[%d:%d]", sRET, sRET + 1)
    a.label("S_o")
    for u in range(4):
        a("s_waitcnt vmcnt(%d)", (3 - u) * 8)
        for j in range(3):
            a("ds_read_b128 %s, v20 offset:%d", vr(BF(j)), j * 4096 + u * 1024)
        kstep(a, u, False)
    a.fence()
    a("s_setpc_b64 s[%d:%d]", sRET, sRET + 1)
    a.label("S_flush")
    for j in range(3):
        for r in range(4):
            d = 120 + (j * 4 + r) * 4
            for k in range(4):
                a("v_cvt_pk_bf16_f32 v%d, v%d, v%d", d + k, AC(2 * k, j) + r, AC(2 * k + 1, j) + r)
            if r == 0:
                a("s_add_u32 s%d, s%d, %d", sT1, sZ, j * 4096)
            a("buffer_store_dwordx4 %s, v%d, %s, s%d offen offset:%d%s", vr(d), vL16, srd(sPs), sT1, r * 1024, pflags)
    a("s_waitcnt vmcnt(0)")
    a.label("S_clear")
    for r in range(24, 120):
        a("v_mov_b32 v%d, 0", r)
    a("s_setpc_b64 s[%d:%d]", sRET, sRET + 1)

    def call(name):
        a("s_call_b64 s[%d:%d], %s", sRET, sRET + 1, name)
    def qmail(src, slot):
        for j in range(3):
            for r in range(4):
                a("ds_write_b32 v19, v%d offset:%d", src + j * 4 + r, MAIL + slot * 12288 + j * 4096 + r * 256)
    def qaddr():
        a("v_and_b32 v16, 15, v%d", WT + 7)
        a("v_lshrrev_b32 v17, 4, v%d", WT + 7)
        a("v_lshlrev_b32 v17, 10, v17")
        a("v_lshl_add_u32 v17, v16, 4, v17")
        a("s_lshl_b32 s%d, s%d, 2", sT1, sJ)
        a("v_add_u32 v19, s%d, v17", sT1)
    def lane():
        a("v_lshrrev_b32 v%d, 4, v%d", WT + 7, vL16)
    def await_(n):
        poll(a, sMG, vZero, C_A, "%d" % (n - 1), "ga", sleep=16)
    def setx(lo):
        a("s_add_u32 s%d, s%d, s34", sXs, lo); a("s_addc_u32 s%d, s%d, 0", sXs + 1, lo + 1)
        a("s_add_u32 s%d, s%d, s35", sWs, lo + 2); a("s_addc_u32 s%d, s%d, 0", sWs + 1, lo + 3)
    def qpass(h):
        a("s_mov_b32 s%d, %d", sWO, 256 * h)
        call("S_q")
        lane(); qaddr()
    def park():
        pass
    def setwo(lo):
        a("s_add_u32 s%d, s%d, s33", sWs, lo); a("s_addc_u32 s%d, s%d, 0", sWs + 1, lo + 1)
    def wload(h):
        a("s_mov_b32 s%d, %d", sWO, h * 131072)
        call("S_w")
    def ostep(slot):
        a("v_add_u32 v20, 0x%x, v%d", SCR + slot * 12288, vL16)
        call("S_o")

    a.label("R_gemm")
    a("s_setprio %d", PRIO["g0"])
    a("s_mov_b32 s%d, 0x05040100", sSL_)
    a("s_mov_b32 s%d, 0x07060302", sSH_)
    a("s_mul_i32 s%d, s%d, 12288", sQB, sJ)
    a("s_add_u32 s%d, s%d, %d", sQB, sQB, SCR)
    a("v_and_b32 v24, 15, v0")
    a("v_lshrrev_b32 v25, 4, v0")
    a("v_lshlrev_b32 v26, 16, v25")
    a("v_lshl_add_u32 v%d, v24, 4, v26", vWq)
    a("v_lshlrev_b32 v26, 12, v25")
    a("v_lshl_add_u32 v%d, v24, 4, v26", vWo)
    a("v_and_b32 v26, 7, v24")
    a("v_lshlrev_b32 v26, 1, v26")
    a("v_xor_b32 v26, v26, v25")
    a("v_lshlrev_b32 v27, 8, v24")
    a("v_add_u32 v27, s%d, v27", sQB)
    for s in range(4):
        a("v_xor_b32 v28, %d, v26", 4 * s)
        a("v_lshl_add_u32 v%d, v28, 4, v27", vXr + s)
    a("v_lshlrev_b32 v26, 10, v25")
    a("v_lshlrev_b32 v27, 1, v25")
    a("v_xor_b32 v27, v27, v24")
    a("v_lshl_add_u32 v%d, v27, 4, v26", vXd0)
    a("v_xor_b32 v27, 8, v27")
    a("v_lshl_add_u32 v%d, v27, 4, v26", vXd1)
    a("s_mul_i32 s34, s%d, 49152", sB)
    a("s_lshl_b32 s%d, s%d, 8", sT1, sJ)
    a("s_add_u32 s34, s34, s%d", sT1)
    a("s_sub_u32 s%d, 786432, s34", sXs + 2); a("s_mov_b32 s%d, 0x20000", sXs + 3)
    a("s_lshl_b32 s35, s%d, 8", sH0)
    a("s_lshl_b32 s%d, s%d, 20", sT1, sJ)
    a("s_add_u32 s35, s35, s%d", sT1)
    a("s_sub_u32 s%d, 0x400000, s35", sWs + 2); a("s_mov_b32 s%d, 0x20000", sWs + 3)
    a("s_lshl_b32 s33, s%d, 17", sH0)
    a("s_lshl_b32 s%d, s%d, 8", sT1, sJ)
    a("s_add_u32 s33, s33, s%d", sT1)
    a("s_mov_b32 s64, s4"); a("s_mov_b32 s65, s5"); a("s_mov_b32 s66, s10"); a("s_mov_b32 s67, s11")
    a("s_mov_b32 s68, s72"); a("s_mov_b32 s69, s73"); a("s_mov_b32 s70, s78"); a("s_mov_b32 s71, s79")
    a("s_lshl_b32 s%d, s%d, 4", sT1, sB)
    a("s_lshr_b32 s%d, s%d, 1", sT2, sH0)
    a("s_add_u32 s%d, s%d, s%d", sT1, sT1, sT2)
    a("s_mul_i32 s%d, s%d, 49152", sT1, sT1)
    a("s_mul_i32 s%d, s%d, 12288", sT2, sJ)
    a("s_add_u32 s%d, s%d, s%d", sT1, sT1, sT2)
    a("s_add_u32 s%d, s20, s%d", sPs, sT1); a("s_addc_u32 s%d, s21, 0", sPs + 1)
    a("s_mov_b32 s%d, %d", sPs + 2, 256 * 49152 + 12288); a("s_mov_b32 s%d, 0x20000", sPs + 3)
    a("s_mov_b32 s%d, 0", sBT); a("s_mov_b32 s%d, 0", sMG)
    a("s_cmp_eq_u32 s%d, 0", sORD)
    a("s_cbranch_scc0 G_ord1")
    setx(64)
    qpass(0); qmail(72, 0)
    qpass(1); qmail(72, 1); arrive(a, C_G)
    a("s_setprio %d", PRIO["g1"])
    setx(68)
    qpass(0); await_(3); qmail(72, 0)
    a("s_branch G_q3")
    a.label("G_ord1")
    setx(68)
    qpass(0); qmail(72, 0); arrive(a, C_G)
    a("s_setprio %d", PRIO["g1"])
    setx(64)
    qpass(0); await_(3); qmail(72, 0)
    qpass(1); qmail(72, 1)
    setx(68)
    a.label("G_q3")
    qpass(1)
    arrive(a, C_G)
    for r in range(12):
        a("v_mov_b32 v%d, v%d", 236 + r, 72 + r)
    call("S_clear")
    if prof: pstamp(a, 1)
    a("s_sub_u32 s%d, 0x400000, s33", sWs + 2)
    await_(6)
    qmail(236, 0); arrive(a, C_G)
    setwo(12)
    wload(0)
    a("s_cmp_eq_u32 s%d, 0", sORD)
    a("s_cbranch_scc1 G_a")
    await_(9)
    a.label("G_a")
    ostep(0); wload(1); ostep(1)
    a("s_mov_b32 s%d, 0", sZ)
    call("S_flush")
    if prof: pstamp(a, 2)
    setwo(80)
    wload(0)
    await_(9)
    ostep(2)
    wload(1)
    if prof: pstamp(a, 3)
    poll(a, sMG, vZero, C_A, "11", "ga", sleep=2)
    a("s_setprio 3")
    ostep(3)
    a("s_mov_b32 s%d, %d", sZ, 256 * 49152)
    call("S_flush")
    if prof: pstamp(a, 4)
    a("s_branch K_end")


def pstamp(a, idx, idxreg=None):
    a("s_memrealtime s[98:99]")
    a("s_waitcnt lgkmcnt(0)")
    a("v_mov_b32 v%d, s98", vVal)
    if idxreg is None:
        a("buffer_store_dword v%d, v%d, s[92:95], 0 offen offset:%d", vVal, vZero, 4 * idx)
    else:
        a("s_lshl_b32 s100, s%d, 2", idxreg)
        a("buffer_store_dword v%d, v%d, s[92:95], s100 offen", vVal, vZero)


def gen_k1(a, kn, T=8.0, prof=False, nomem=False, wflags=" nt", pflags=" sc0 sc1"):
    kernel_begin(a, kn)
    a("s_cmp_ge_u32 s2, 256")
    a("s_cbranch_scc1 K_end")
    a("s_load_dwordx8 s[4:11], s[0:1], 0")
    a("s_load_dwordx2 s[12:13], s[0:1], 32")
    a("s_load_dwordx8 s[72:79], s[0:1], 40")
    a("s_load_dwordx2 s[80:81], s[0:1], 72")
    a("s_load_dwordx2 s[20:21], s[0:1], 96")
    a("v_lshrrev_b32 v1, 6, v0")
    a("v_and_b32 v0, 63, v0")
    a("v_readfirstlane_b32 s%d, v1", sWV)
    a("v_lshlrev_b32 v%d, 4, v0", vL16)
    a("v_mov_b32 v%d, 0", vZero)
    a("v_lshlrev_b32 v%d, 2, v0", vPoll)
    a("ds_write_b32 v%d, v%d", vPoll, vZero)
    a("s_and_b32 s%d, s2, 7", sX)
    a("s_lshr_b32 s%d, s2, 3", sI)
    a("s_lshr_b32 s%d, s%d, 1", sB, sI)
    a("s_and_b32 s%d, s%d, 1", sS2, sI)
    a("s_and_b32 s%d, s%d, 1", sORD, sB)
    a("s_lshl_b32 s%d, s%d, 2", sH0, sX)
    a("s_lshl_b32 s%d, s%d, 1", sT1, sS2)
    a("s_add_u32 s%d, s%d, s%d", sH0, sH0, sT1)
    a("s_and_b32 s%d, s%d, 3", sJ, sWV)
    a("s_lshl_b32 s%d, s%d, 2", sT1, sJ)
    a("v_mov_b32 v%d, s%d", vJ4, sT1)
    a("s_waitcnt lgkmcnt(0)")
    if prof:
        a("s_lshl_b32 s100, s2, 3")
        a("s_add_u32 s100, s100, s%d", sWV)
        a("s_lshl_b32 s100, s100, 6")
        a("s_add_u32 s100, s100, 0x1000000 + 0x1000000")
        a("s_add_u32 s92, s20, s100"); a("s_addc_u32 s93, s21, 0"); a("s_mov_b32 s94, 64"); a("s_mov_b32 s95, 0x20000")
        pstamp(a, 0)
        a("s_waitcnt vmcnt(0)")
    a("s_barrier")
    a("s_cmp_lt_u32 s%d, 3", sWV)
    a("s_cbranch_scc1 R_att")
    a("s_cmp_eq_u32 s%d, 3", sWV)
    a("s_cbranch_scc1 R_kv")
    a("s_branch R_gemm")
    gen_kvload(a, nomem)
    gen_att(a, T, prof)
    gen_gemm(a, prof, wflags, pflags)
    a.label("K_end")
    a("s_waitcnt vmcnt(0)")
    a("s_endpgm")


def gen_k2(a, kn, rflags=""):
    kernel_begin(a, kn)
    a("s_cmp_ge_u32 s2, 384")
    a("s_cbranch_scc1 K2_end")
    a("s_load_dwordx2 s[4:5], s[0:1], 80")
    a("s_load_dwordx2 s[6:7], s[0:1], 96")
    a("v_lshrrev_b32 v1, 6, v0")
    a("v_and_b32 v0, 63, v0")
    a("v_readfirstlane_b32 s8, v1")
    a("v_lshlrev_b32 v1, 4, v0")
    a("s_lshl_b32 s9, s2, 2")
    a("s_add_u32 s9, s9, s8")
    a("s_mul_hi_u32 s10, s9, 0x%x", (2 ** 32 + 47) // 48)
    a("s_mul_i32 s11, s10, 48")
    a("s_sub_u32 s11, s9, s11")
    a("s_mul_i32 s12, s10, %d", 16 * 49152)
    a("s_lshl_b32 s13, s11, 10")
    a("s_add_u32 s12, s12, s13")
    a("s_waitcnt lgkmcnt(0)")
    a("s_add_u32 s16, s6, s12"); a("s_addc_u32 s17, s7, 0"); a("s_mov_b32 s18, %d", 16 * 49152); a("s_mov_b32 s19, 0x20000")
    a("s_mov_b32 s20, s4"); a("s_mov_b32 s21, s5"); a("s_mov_b32 s22, %d", 16 * 48 * 1024 * 2); a("s_mov_b32 s23, 0x20000")
    for k in range(16):
        a("s_mov_b32 s13, %d", k * 49152)
        a("buffer_load_dwordx4 %s, v1, s[16:19], s13 offen%s", vr(16 + 4 * k), rflags)
    a("s_mul_hi_u32 s24, s11, 0x%x", (2 ** 32 + 11) // 12)
    a("s_mul_i32 s25, s24, 12")
    a("s_sub_u32 s25, s11, s25")
    a("s_and_b32 s13, s10, 15")
    a("s_mul_i32 s13, s13, 48")
    a("s_lshr_b32 s14, s25, 2")
    a("s_lshl_b32 s14, s14, 4")
    a("s_add_u32 s13, s13, s14")
    a("s_lshl_b32 s13, s13, 11")
    a("s_lshr_b32 s14, s10, 4")
    a("s_lshl_b32 s14, s14, 10")
    a("s_add_u32 s13, s13, s14")
    a("s_lshl_b32 s14, s24, 8")
    a("s_add_u32 s13, s13, s14")
    a("s_and_b32 s14, s25, 3")
    a("s_lshl_b32 s14, s14, 4")
    a("s_add_u32 s13, s13, s14")
    a("v_and_b32 v2, 15, v0")
    a("v_lshrrev_b32 v3, 4, v0")
    a("v_lshlrev_b32 v2, 11, v2")
    a("v_lshl_add_u32 v2, v3, 6, v2")
    for k in range(16):
        a("s_waitcnt vmcnt(%d)", 15 - k)
        for d in range(4):
            r = 16 + 4 * k + d
            if k == 0:
                a("v_lshlrev_b32 v%d, 16, v%d", 4 + 2 * d, r)
                a("v_and_b32 v%d, 0xffff0000, v%d", 5 + 2 * d, r)
            else:
                a("v_lshlrev_b32 v12, 16, v%d", r)
                a("v_and_b32 v13, 0xffff0000, v%d", r)
                a("v_add_f32 v%d, v%d, v12", 4 + 2 * d, 4 + 2 * d)
                a("v_add_f32 v%d, v%d, v13", 5 + 2 * d, 5 + 2 * d)
    for d in range(4):
        a("v_cvt_pk_bf16_f32 v%d, v%d, v%d", 12 + d, 4 + 2 * d, 5 + 2 * d)
    a("buffer_store_dwordx4 v[12:15], v2, s[20:23], s13 offen")
    a("s_waitcnt vmcnt(0)")
    a.label("K2_end")
    a("s_endpgm")


def main(fname, which=(0, 1), rflags="", prio=None, **kw):
    if prio: PRIO.update(prio)
    a = HAsm()
    gen_k1(a, "attn_kernel", **kw)
    gen_k2(a, "reduce_kernel", rflags)
    Ls = [("attn_kernel", (256, 1, 1), (512, 1, 1), LDS_TOTAL), ("reduce_kernel", (384, 1, 1), (256, 1, 1), 0)]
    txt = full_file([Ls[i] for i in which], a.text(), [kernel_desc("attn_kernel", 256), kernel_desc("reduce_kernel", 80)])
    open(fname, "w").write(txt)

if __name__ == "__main__":
    main("v9.s")
    main("v9_t0.s", T=-1.0)
    main("v9_p.s", which=(0,), prof=True)
    main("v9_nomem.s", which=(0,), prof=True, nomem=True)
    main("v9_p2.s", which=(0,), prof=True, prio=dict(kv=2, att=1, g0=3, g1=0))
    main("v9_p3.s", which=(0,), prof=True, prio=dict(kv=1, att=2, g0=3, g1=1))
```

```python
import re
from asmgen import Asm

_R = re.compile(r"\bv(\d+)\b|\bv\[(\d+):(\d+)\]")
def regs(txt):
    out = []
    for m in _R.finditer(txt):
        if m.group(1) is not None:
            out.append(int(m.group(1)))
        else:
            out.extend(range(int(m.group(2)), int(m.group(3)) + 1))
    return out

TRANS = ("v_exp_f32", "v_rcp_f32", "v_log_f32", "v_rsq_f32", "v_sqrt_f32")

class HAsm(Asm):
    def __init__(self):
        super().__init__()
        self.t = 0
        self.mf_w = {}
        self.mf_c = {}
        self.va_w = {}
        self.tr_w = {}
        self.st_r = {}
        self.sg_w = {}
    def _need(self, table, rs, dist):
        n = 0
        for r in rs:
            if r in table:
                n = max(n, dist - (self.t - table[r] - 1))
        return n
    def pad(self, n):
        while n > 0:
            k = min(n, 8)
            self.lines.append("    s_nop %d" % (k - 1))
            self.t += k
            n -= k
    def label(self, name):
        super().label(name)
    def fence(self):
        n = 0
        for r, t in self.mf_w.items():
            n = max(n, 8 - (self.t - t - 1))
        self.pad(n)
    def __call__(self, s, *a):
        if a:
            s = s % a
        op = s.split()[0]
        rest = s[len(op):]
        ops = [x.strip() for x in rest.split(",")]
        need = 0
        if op.startswith("v_mfma"):
            d, A, B, C = regs(ops[0]), regs(ops[1]), regs(ops[2]), regs(ops[3])
            need = max(need, self._need(self.va_w, A + B + C, 2))
            need = max(need, self._need(self.mf_w, A + B, 8))
            if C and C != d:
                need = max(need, self._need(self.mf_w, C, 6))
            if not C:
                need = max(need, self._need(self.mf_w, d, 0))
            self.pad(need)
            for r in d: self.mf_w[r] = self.t
            for r in C: self.mf_c[r] = self.t
        elif op.startswith("v_"):
            allr = regs(rest)
            if op.startswith("v_cmp") or op.startswith("v_readfirstlane") or op.startswith("v_readlane"):
                d, src = [], allr
            else:
                d, src = regs(ops[0]), regs(",".join(ops[1:]))
            if op.startswith("v_permlane"):
                d = src = allr
                need = max(need, self._need(self.va_w, allr, 2))
            if op.startswith("v_fmac"):
                src = src + d
            if op.startswith("v_readfirstlane") or op.startswith("v_readlane"):
                need = max(need, self._need(self.va_w, src, 1))
            need = max(need, self._need(self.mf_w, d + src, 8))
            need = max(need, self._need(self.mf_c, d, 3))
            need = max(need, self._need(self.st_r, d, 2))
            if op not in TRANS:
                need = max(need, self._need(self.tr_w, src, 1))
            self.pad(need)
            for r in d:
                self.va_w[r] = self.t
                self.mf_w.pop(r, None)
                if op in TRANS: self.tr_w[r] = self.t
                else: self.tr_w.pop(r, None)
        elif op.startswith("ds_") or op.startswith("buffer_") or op.startswith("global_"):
            allr = regs(rest)
            need = max(need, self._need(self.mf_w, allr, 8))
            need = max(need, self._need(self.tr_w, allr, 1))
            self.pad(need)
            if "store_dwordx4" in op or "store_dwordx3" in op:
                for r in regs(ops[0]): self.st_r[r] = self.t
        elif op == "s_nop":
            self.lines.append("    " + s)
            self.t += int(ops[0]) + 1
            return
        self.lines.append("    " + s)
        self.t += 1
```

```python
import sys, math, struct
from asmgen import *
from hz import HAsm
from gen_v1 import f2u, vr, MFMA
import gen_v1

PRIO = dict(b=0, a=1, g=3, g2=2, g3=2)
OPT = dict(warm=' nt', gwait=True, woflags=' nt')
SCR = 1024
GEO = dict(KB=3, VB=2, NA=4)
def geo():
    global KB, VB, NA, BR0, BSZ, LDS_TOTAL
    KB, VB, NA = GEO["KB"], GEO["VB"], GEO["NA"]
    BR0 = SCR + 2 * NA * 8192
    BSZ = (KB + VB) * 8192
    LDS_TOTAL = BR0 + 2 * BSZ
    assert LDS_TOTAL <= 163840
geo()
C_G, C_A, C_BAR, C_P, C_W, C_BAR2, C_W0, C_O, C_TH, C_F = 32, 4, 8, 12, 16, 48, 20, 64, 24, 28
FWS = 0x1800000
srd = lambda b: "s[%d:%d]" % (b, b + 3)

vL16, vZero, vPoll, vVal = 1, 2, 3, 4
sWV, sX, sI, sJ, sB, sS2, sH0 = 22, 23, 24, 25, 26, 27, 29
sT1, sT2 = 30, 31
sBB, sHB = 28, 67

def poll(a, sreg, off, cond, sleep=1):
    l0, l1 = a.newlabel("L_p"), a.newlabel("L_q")
    a.label(l0)
    a("ds_read_b32 v%d, v%d offset:%d", vPoll, vZero, off)
    a("s_waitcnt lgkmcnt(0)")
    a("v_readfirstlane_b32 s%d, v%d", sreg, vPoll)
    a("s_cmp_ge_u32 s%d, %s", sreg, cond)
    a("s_cbranch_scc1 %s", l1)
    if sleep: a("s_sleep %d", sleep)
    a("s_branch %s", l0)
    a.label(l1)

def arrive(a, off, wait=True):
    if wait: a("s_waitcnt lgkmcnt(0)")
    a("s_mov_b64 exec, 1")
    a("ds_add_u32 v%d, v%d offset:%d", vZero, vVal, off)
    a("s_mov_b64 exec, -1")

def pstamp(a, idx):
    a("s_memrealtime s[98:99]")
    a("s_waitcnt lgkmcnt(0)")
    a("v_mov_b32 v%d, s98", vPoll)
    a("buffer_store_dword v%d, v%d, s[92:95], 0 offen offset:%d", vPoll, vZero, 4 * idx)

vD = 5
vKr, vVr, vM = 8, 12, 20
O = lambda e, j: 24 + (e * 3 + j) * 4
L = lambda j: 120 + j * 4
S = lambda t, j: 132 + (t * 3 + j) * 4
Q = lambda j, s: 156 + (j * 4 + s) * 4
ONES = 204
F = lambda k: 208 + k * 4
P = lambda j: 240 + j * 4
MX0, MX1 = 252, 253
RT = 240
sSK, sSV, sO = 36, 40, 44
sC, sT, sCNT = 48, 49, 50
sKO, sVO, sKL, sVL, sKB, sVB = 51, 52, 53, 54, 55, 56
sKS, sVS, sDK, sDV, sBP, sKN, sVN, sTH = 57, 58, 59, 60, 61, 64, 65, 66

def emit(a, groups):
    for g in groups:
        for s in g: a(s)
def adv3(reg):
    lim = sKN if reg in (sKL, sKS) else sVN
    return ["s_add_u32 s%d, s%d, 8192" % (reg, reg), "s_cmp_eq_u32 s%d, s%d" % (reg, lim), "s_cselect_b32 s%d, 0, s%d" % (reg, reg)]
def unit(isV):
    which, soff, sl, sb = (sSV, sVO, sVL, sVB) if isV else (sSK, sKO, sKL, sKB)
    ops = []
    for half in range(2):
        for i in range(4):
            g = []
            if i == 0:
                if half == 0:
                    g.append("s_add_u32 m0, s%d, s%d" % (sl, sb))
                    g.append("s_nop 0")
                else:
                    g.append("s_add_u32 m0, m0, 4096")
                    g.append("s_add_u32 s%d, s%d, 4096" % (soff, soff))
            g.append("buffer_load_dwordx4 v%d, %s, s%d offen offset:%d nt lds" % (vD + (i & 1), srd(which), soff, i * 1024))
            ops.append(g)
    ops.append(["s_add_u32 s%d, s%d, 4096" % (soff, soff)] + adv3(sl))
    return ops
def kread(k): return "ds_read_b128 %s, v%d offset:%d" % (vr(F(k)), vKr + (k & 3), (k >> 2) * 4096)
def vread(e): return ["ds_read_b64_tr_b16 %s, v%d offset:%d" % (vr(F(e) + 2 * hh, 2), vVr + e, hh * 4096) for hh in range(2)]
def smf(k): return ["%s %s, %s, %s, %s" % (MFMA, vr(S(k >> 2, j)), vr(F(k)), vr(Q(j, k & 3)), "0" if (k & 3) == 0 else vr(S(k >> 2, j))) for j in range(3)]
def pvf(e):
    if e < 8:
        return ["%s %s, %s, %s, %s" % (MFMA, vr(O(e, j)), vr(F(e)), vr(P(j)), vr(O(e, j))) for j in range(3)]
    return ["%s %s, %s, %s, %s" % (MFMA, vr(L(j)), vr(ONES), vr(P(j)), vr(L(j))) for j in range(3)]
def fma(t): return ["v_fma_f32 v%d, v%d, s%d, -v%d" % (S(t, j) + r, S(t, j) + r, sC, vM + j) for j in range(3) for r in range(4)]
def mx(t):
    r = [S(t, j) + i for j in range(3) for i in range(4)]
    d = MX0 if t == 0 else MX1
    out = ["v_max3_f32 v%d, v%d, v%d, v%d" % (d, r[0], r[1], r[2])]
    for k in range(3, 11, 2):
        out.append("v_max3_f32 v%d, v%d, v%d, v%d" % (d, d, r[k], r[k + 1]))
    out.append(("v_max_f32 v%d, v%d, v%d" % (d, d, r[11])) if t == 0 else ("v_max3_f32 v%d, v%d, v%d, v%d" % (d, d, r[11], MX0)))
    return out
def fmamx(t):
    f, m = fma(t), mx(t)
    return f[0:5] + [m[0]] + f[5:7] + [m[1]] + f[7:9] + [m[2]] + f[9:11] + [m[3]] + f[11:12] + [m[4], m[5]]
def exps(t): return ["v_exp_f32 v%d, v%d" % (S(t, j) + r, S(t, j) + r) for j in range(3) for r in range(4)]
def cvts(t): return ["v_cvt_pk_bf16_f32 v%d, v%d, v%d" % (P(j) + 2 * t + k, S(t, j) + 2 * k, S(t, j) + 2 * k + 1) for j in range(3) for k in range(2)]
def weave(a, mf, fill):
    n = len(mf); k = 0
    for i, m in enumerate(mf):
        a(m)
        tgt = (len(fill) * (i + 1)) // n
        while k < tgt:
            a(fill[k]); k += 1
def rowmax(a):
    for j in range(3):
        d = RT + j
        a("v_max3_f32 v%d, v%d, v%d, v%d", d, S(0, j), S(0, j) + 1, S(0, j) + 2)
        a("v_max3_f32 v%d, v%d, v%d, v%d", d, d, S(0, j) + 3, S(1, j))
        a("v_max3_f32 v%d, v%d, v%d, v%d", d, d, S(1, j) + 1, S(1, j) + 2)
        a("v_max_f32 v%d, v%d, v%d", d, d, S(1, j) + 3)
    for sw in ("v_permlane32_swap_b32", "v_permlane16_swap_b32"):
        for j in range(3): a("v_mov_b32 v%d, v%d", RT + 3 + j, RT + j)
        for j in range(3): a("%s v%d, v%d", sw, RT + j, RT + 3 + j)
        a("s_nop 1")
        for j in range(3): a("v_max_f32 v%d, v%d, v%d", RT + j, RT + j, RT + 3 + j)
def shift_x(a):
    for j in range(3):
        a("v_add_f32 v%d, v%d, v%d", vM + j, vM + j, RT + j)
        for t in range(2):
            for r in range(4):
                a("v_sub_f32 v%d, v%d, v%d", S(t, j) + r, S(t, j) + r, RT + j)
def rescale(a):
    rowmax(a)
    for j in range(3):
        a("v_max_f32 v%d, 0, v%d", RT + j, RT + j)
        a("v_exp_f32 v%d, -v%d", RT + 3 + j, RT + j)
    shift_x(a)
    for j in range(3):
        for e in range(8):
            for r in range(4):
                a("v_mul_f32 v%d, v%d, v%d", O(e, j) + r, O(e, j) + r, RT + 3 + j)
        for r in range(4):
            a("v_mul_f32 v%d, v%d, v%d", L(j) + r, L(j) + r, RT + 3 + j)
def step(sreg, sd, regs_):
    return (["s_mov_b32 s%d, s%d" % (sd, sreg)] + adv3(sreg) + ["s_sub_u32 s%d, s%d, s%d" % (sd, sreg, sd)],
            ["v_add_u32 v%d, s%d, v%d" % (r, sd, r) for r in regs_])

SEG = [False]
def seg(a, i):
    if not SEG[0]: return
    a("s_memtime s[98:99]")
    a("s_waitcnt lgkmcnt(0)")
    a("s_sub_u32 s100, s98, s96")
    a("s_add_u32 s%d, s%d, s100", 82 + i, 82 + i)
    a("s_mov_b32 s96, s98")

def throttle(a):
    if OPT.get("th") is None: return
    lab = a.newlabel("L_th")
    a("s_cmp_eq_u32 s%d, 0", sTH)
    a("s_cbranch_scc1 %s", lab)
    a("s_waitcnt vmcnt(%d)", OPT["th"])
    a.label(lab)

def body(a, kind, first, last, tag):
    B = kind == "B"
    if B and not first:
        seg(a, 0)
        a("s_waitcnt vmcnt(%d)", 16 * (VB - 1))
        seg(a, 1)
    ksc, kx = step(sKS, sDK, range(vKr, vKr + 4))
    for s in ksc: a(s)
    xi = unit(0) if B else []
    e1 = [] if first else exps(1)
    c1 = [] if first else cvts(1)
    f0 = fmamx(0)
    fills = [e1[0:4], e1[4:8], e1[8:12], c1, kx, f0[0:6], f0[6:12], f0[12:18]]
    for k in range(8):
        a("s_waitcnt lgkmcnt(%d)", (7 - k) if first else (7 + k) if k < 3 else 6 if k == 3 else 13)
        weave(a, smf(k), fills[k])
        if not first:
            for s in vread(k): a(s)
        if first and k == 3:
            a("s_waitcnt lgkmcnt(0)")
        if k == 3 and xi: throttle(a)
        if k >= 3 and xi:
            n = 2 if k < 7 else len(xi)
            emit(a, xi[:n]); xi = xi[n:]
    f1 = fmamx(1)
    vsc, vx = step(sVS, sDV, range(vVr, vVr + 8))
    def sync_arrive():
        if not B:
            seg(a, 0)
            a("s_waitcnt vmcnt(%d) lgkmcnt(0)", 8 * (NA - 2))
            seg(a, 1)
            arrive(a, C_P, wait=False)
            a("s_add_u32 s%d, s%d, 2", sBP, sBP)
    def sync_wait():
        seg(a, 2)
        sync_wait2()
        seg(a, 3)
    def sync_wait2():
        if B:
            n = 2 * KB - 1
            if first and 1 - KB + VB - 1 < 0: n -= 1
            a("s_waitcnt vmcnt(%d)", 8 * n)
        else:
            poll(a, sT2, C_P, "s%d" % sBP, sleep=0)
    if first:
        sync_arrive()
        if B: emit(a, unit(1))
        a("s_nop 4")
        for s in fma(1): a(s)
        sync_wait()
        for k in range(8): a(kread(k))
        if not B:
            a("s_and_b32 s%d, s%d, 1", sT1, sWV)
            a("s_cbranch_scc1 L_af_%s", tag)
            emit(a, unit(0))
            a.label("L_af_" + tag)
        rowmax(a)
        shift_x(a)
        for s in exps(0): a(s)
        for s in cvts(0): a(s)
        return
    a("s_waitcnt lgkmcnt(14)")
    for s in vsc: a(s)
    weave(a, pvf(0), vx[0:4])
    a("s_waitcnt lgkmcnt(12)")
    weave(a, pvf(1), f1[0:8])
    if B and OPT.get("th") is not None:
        a("ds_read_b32 v%d, v%d offset:%d", vPoll, vZero, C_TH)
    a("s_waitcnt lgkmcnt(0)")
    if B and OPT.get("th") is not None:
        a("v_readfirstlane_b32 s%d, v%d", sTH, vPoll)
    sync_arrive()
    weave(a, pvf(2), f1[8:18])
    a("v_cmp_nge_f32 vcc, s%d, v%d", sT, MX1)
    def rest(fill):
        yi = unit(1) if B else []
        if B: throttle(a)
        emit(a, yi[:4])
        weave(a, pvf(3), fill[0:2] + vx[4:8])
        emit(a, yi[4:])
        sync_wait()
        if not last:
            for k in range(4): a(kread(k))
        zi = [] if B else unit(0)
        for e in range(4, 9):
            weave(a, pvf(e), fill[2 * (e - 3):2 * (e - 2)])
            if e < 8 and not last:
                a(kread(e))
            n = 2 if e < 8 else len(zi)
            emit(a, zi[:n]); zi = zi[n:]
    a("s_cbranch_vccnz L_rare_%s", tag)
    rest(exps(0))
    a.label("L_join_" + tag)
    a("s_nop 0")
    for s in cvts(0): a(s)
    def rare():
        a.label("L_rare_" + tag)
        rest([])
        a("s_nop 7")
        rescale(a)
        for s in exps(0): a(s)
        a("s_branch L_join_%s", tag)
    return rare

def epilogue(a, kind):
    if kind == "B":
        a("s_waitcnt vmcnt(%d)", 16 * (VB - 1))
    for e in range(7):
        for s in vread(e): a(s)
    for s in exps(1): a(s)
    a("s_waitcnt lgkmcnt(6)")
    for s in vread(7): a(s)
    for s in cvts(1): a(s)
    a("s_waitcnt lgkmcnt(0)")
    for e in range(9):
        for s in pvf(e): a(s)

def gen_att(a, T, prof, nomem, oflags):
    a.label("R_att")
    a("v_and_b32 v252, 15, v0")
    a("v_lshrrev_b32 v253, 4, v0")
    a("v_lshlrev_b32 v255, 8, v253")
    a("v_lshlrev_b32 v254, 1, v253")
    a("v_xor_b32 v254, v254, v252")
    for i in range(2):
        a("v_xor_b32 v24, %d, v254", 8 * i)
        a("v_lshl_add_u32 v%d, v24, 4, v255", vD + i)
    NR = 0 if nomem else 0x40000
    a("s_mov_b32 s%d, %d", sSK + 2, NR); a("s_mov_b32 s%d, 0x20000", sSK + 3)
    a("s_mov_b32 s%d, %d", sSV + 2, NR); a("s_mov_b32 s%d, 0x20000", sSV + 3)
    for r in (sKO, sVO, sKL, sVL, sKS, sVS, sBP, sTH):
        a("s_mov_b32 s%d, 0", r)
    a("s_and_b32 s%d, s%d, 1", sT1, sWV)
    a("s_lshl_b32 s32, s%d, 5", sB)
    a("s_add_u32 s32, s32, s%d", sH0)
    a("s_add_u32 s32, s32, s%d", sT1)
    a("s_cmp_ge_u32 s%d, 2", sWV)
    a("s_cbranch_scc1 L_setA")
    a("s_setprio %d", PRIO["b"])
    a("s_lshl_b32 s33, s32, 18")
    a("s_add_u32 s%d, s74, s33", sSK); a("s_addc_u32 s%d, s75, 0", sSK + 1)
    a("s_add_u32 s%d, s76, s33", sSV); a("s_addc_u32 s%d, s77, 0", sSV + 1)
    a("s_mul_i32 s%d, s%d, %d", sKB, sWV, BSZ)
    a("s_add_u32 s%d, s%d, %d", sKB, sKB, BR0)
    a("s_add_u32 s%d, s%d, %d", sVB, sKB, KB * 8192)
    a("s_mov_b32 s%d, %d", sKN, KB * 8192); a("s_mov_b32 s%d, %d", sVN, VB * 8192)
    init = []
    for i in range(-max(KB, VB), 0):
        if i + KB >= 0: init.append(0)
        if i + VB - 1 >= 0: init.append(1)
    if OPT["warm"] is not None:
        poll(a, sT2, C_W if OPT.get("pflate") else C_W0, "2", sleep=0)
    for c in init:
        emit(a, unit(c))
    a("s_mov_b32 s34, s%d", sKB); a("s_mov_b32 s35, s%d", sVB)
    a("s_branch L_set")
    a.label("L_setA")
    if OPT.get("fuse"):
        a("s_cmp_lg_u32 s%d, 2", sWV)
        a("s_cbranch_scc1 L_noinit")
        a("s_add_u32 s60, s20, 0x%x", FWS); a("s_addc_u32 s61, s21, 0"); a("s_mov_b32 s62, 4096"); a("s_mov_b32 s63, 0x20000")
        a("s_lshl_b32 s%d, s%d, 7", sT1, sB)
        a("s_lshl_b32 s%d, s%d, 1", sT2, sH0)
        a("s_add_u32 s%d, s%d, s%d", sT1, sT1, sT2)
        a("s_mov_b64 exec, 1")
        a("buffer_store_dword v%d, v%d, s[60:63], s%d offen sc0 sc1", vZero, vZero, sT1)
        a("buffer_store_dword v%d, v%d, s[60:63], s%d offen offset:2048 sc0 sc1", vZero, vZero, sT1)
        a("s_waitcnt vmcnt(0)")
        a("s_mov_b32 s60, s18"); a("s_mov_b32 s61, s19"); a("s_mov_b32 s62, 256")
        a("s_lshl_b32 s%d, s%d, 2", sT1, sB)
        a("buffer_atomic_add v%d, v%d, s[60:63], s%d offen sc1", vVal, vZero, sT1)
        a("s_mov_b64 exec, -1")
        a("s_waitcnt vmcnt(0)")
        a("s_mov_b32 s%d, 0", sBP)
        a.label("L_noinit")
    if OPT["warm"] is not None:
        wf = OPT["warm"]
        a("s_setprio 3")
        a("s_mov_b32 s63, 0x20000")
        a("s_and_b32 s33, s%d, 1", sWV)
        for br, wp in enumerate((78, 10)):
            if br == 1:
                if not OPT.get("warmA"): break
                poll(a, sT2, C_A, "1", sleep=4)
            a("s_mov_b32 s60, s%d", wp); a("s_mov_b32 s61, s%d", wp + 1); a("s_mov_b32 s62, 0x400000")
            a("s_lshl_b32 s%d, s%d, 17", sT1, sI)
            a("s_lshl_b32 s%d, s33, 16", sT2)
            a("s_add_u32 s%d, s%d, s%d", sT1, sT1, sT2)
            a("s_lshl_b32 s%d, s%d, 10", sT2, sX)
            a("s_add_u32 s%d, s%d, s%d", sT1, sT1, sT2)
            for k in range(8):
                a("buffer_load_dwordx4 %s, v%d, s[60:63], s%d offen%s", vr(24 + 4 * k), vL16, sT1, wf)
                a("s_add_u32 s%d, s%d, 8192", sT1, sT1)
            if br == 0:
                arrive(a, C_W0)
            a("s_waitcnt vmcnt(0)")
            if br == 0:
                arrive(a, C_W)
                if prof: pstamp(a, 3)
        a("s_mov_b32 s%d, 0", sBP)
    if OPT.get("l2pf"):
        nt_, depth = OPT["l2pf"]
        a("s_setprio 0")
        a("s_lshl_b32 s33, s32, 18")
        a("s_mov_b32 s62, 0x40000"); a("s_mov_b32 s63, 0x20000")
        a("s_mov_b32 s70, 0x40000"); a("s_mov_b32 s71, 0x20000")
        a("s_add_u32 s60, s74, s33"); a("s_addc_u32 s61, s75, 0")
        a("s_add_u32 s68, s76, s33"); a("s_addc_u32 s69, s77, 0")
        for d in range(OPT.get("l2delay", 0)): a("s_sleep 32")
        n = 0
        for t in range(nt_):
            for isV in (1, 0):
                tile = t + (VB - 1 if isV else KB)
                for k in range(8):
                    if k % 4 == 0:
                        a("s_mov_b32 s%d, %d", sT1, tile * 8192 + k * 1024)
                    a("buffer_load_dwordx4 %s, v%d, %s, s%d offen offset:%d nt", vr(24 + 4 * (n % 32)), vL16, "s[68:71]" if isV else "s[60:63]", sT1, (k % 4) * 1024)
                    n += 1
                    if n % 4 == 0 and n >= depth:
                        a("s_waitcnt vmcnt(%d)", depth - 4)
        a("s_waitcnt vmcnt(0)")
        a("s_mov_b32 s%d, 0", sBP)
    a("s_setprio %d", PRIO["a"])
    a("s_lshl_b32 s33, s%d, 3", sB)
    a("s_add_u32 s33, s33, s%d", sX)
    a("s_lshl_b32 s33, s33, 18")
    a("s_cmp_eq_u32 s%d, 3", sWV)
    a("s_cselect_b32 s%d, s8, s6", sSK); a("s_cselect_b32 s%d, s9, s7", sSK + 1)
    a("s_mov_b32 s34, %d", SCR); a("s_mov_b32 s35, %d", SCR + NA * 8192)
    a("s_mov_b32 s%d, %d", sKN, NA * 8192); a("s_mov_b32 s%d, %d", sVN, NA * 8192)
    a("s_cselect_b32 s%d, s35, s34", sKB)
    a("s_add_u32 s%d, s%d, s33", sSK, sSK); a("s_addc_u32 s%d, s%d, 0", sSK + 1, sSK + 1)
    a("s_mov_b32 s%d, s%d", sSV, sSK); a("s_mov_b32 s%d, s%d", sSV + 1, sSK + 1); a("s_mov_b32 s%d, s%d", sVB, sKB)
    a.label("L_set")
    a("s_mov_b32 s%d, 0x%x", sC, f2u(128 ** -0.5 * math.log2(math.e)))
    a("s_mov_b32 s%d, 0x%x", sT, f2u(T))
    a("v_and_b32 v254, 7, v252")
    a("v_lshlrev_b32 v254, 1, v254")
    a("v_xor_b32 v254, v254, v253")
    a("v_lshlrev_b32 v255, 8, v252")
    a("v_add_u32 v255, s34, v255")
    for s in range(4):
        a("v_xor_b32 v24, %d, v254", 4 * s)
        a("v_lshl_add_u32 v%d, v24, 4, v255", vKr + s)
    a("v_lshrrev_b32 v254, 2, v252")
    a("v_lshl_add_u32 v254, v253, 2, v254")
    a("v_and_b32 v255, 3, v252")
    a("v_lshlrev_b32 v255, 3, v255")
    a("v_lshl_add_u32 v255, v254, 8, v255")
    a("v_add_u32 v255, s35, v255")
    a("v_and_b32 v254, 7, v254")
    for e in range(8):
        a("v_xor_b32 v24, %d, v254", e)
        a("v_lshl_add_u32 v%d, v24, 5, v255", vVr + e)
    for k in range(4):
        a("v_mov_b32 v%d, 0x3f803f80", ONES + k)
    for r in range(24, 132):
        a("v_mov_b32 v%d, 0", r)
    for j in range(3):
        a("v_mov_b32 v%d, 0", vM + j)
    a("s_mov_b32 s%d, 1", sCNT)
    a("s_lshl_b32 s%d, s%d, 2", sT1, sWV)
    a("v_mov_b32 v7, s%d", sT1)
    a.label("L_wq")
    a("ds_read_b32 v%d, v7 offset:%d", vPoll, C_G)
    a("s_waitcnt lgkmcnt(0)")
    a("v_readfirstlane_b32 s%d, v%d", sT2, vPoll)
    a("s_cmp_ge_u32 s%d, 2", sT2)
    a("s_cbranch_scc1 L_wq2")
    a("s_sleep 2")
    a("s_branch L_wq")
    a.label("L_wq2")
    a("s_and_b32 s%d, s%d, 1", sT1, sWV)
    a("s_mul_i32 s%d, s%d, 12288", sT1, sT1)
    a("v_lshrrev_b32 v7, 1, v%d", vL16)
    a("v_add_u32 v7, s%d, v7", sT1)
    for f in range(12):
        a("ds_read_b64 %s, v7 offset:%d", vr(Q(0, 0) + 4 * f, 2), SCR + 24576 + f * 512)
        a("ds_read_b64 %s, v7 offset:%d", vr(Q(0, 0) + 4 * f + 2, 2), SCR + f * 512)
        if f == 6: a("s_waitcnt lgkmcnt(4)")
    arrive(a, C_A)
    if prof: pstamp(a, 1)
    rares = []
    if SEG[0]:
        a("s_mov_b32 s96, 0")
        for i in range(6): a("s_mov_b32 s%d, 0", 82 + i)
    a("s_cmp_ge_u32 s%d, 2", sWV)
    a("s_cbranch_scc1 L_runA")
    a("s_waitcnt vmcnt(%d)", 8 * (len(init) - 1 - init.index(0)))
    for k in range(8): a(kread(k))
    if prof: a("s_waitcnt vmcnt(0)")
    seg(a, 5)
    body(a, "B", True, False, "B0")
    a.label("L_loopB")
    rares.append(body(a, "B", False, False, "B1"))
    a("s_add_u32 s%d, s%d, 1", sCNT, sCNT)
    a("s_cmp_lt_u32 s%d, 31", sCNT)
    a("s_cbranch_scc1 L_loopB")
    rares.append(body(a, "B", False, True, "B2"))
    epilogue(a, "B")
    a("s_branch L_out")
    a.label("L_runA")
    poll(a, sT2, C_A, "4", sleep=2)
    a("ds_write_b32 v%d, v%d offset:%d", vZero, vVal, C_TH)
    for k in range(NA): emit(a, unit(0))
    a("s_waitcnt vmcnt(%d)", 8 * (NA - 1))
    arrive(a, C_P)
    a("s_add_u32 s%d, s%d, 2", sBP, sBP)
    poll(a, sT2, C_P, "s%d" % sBP, sleep=0)
    for k in range(8): a(kread(k))
    seg(a, 5)
    body(a, "A", True, False, "A0")
    a.label("L_loopA")
    rares.append(body(a, "A", False, False, "A1"))
    a("s_add_u32 s%d, s%d, 1", sCNT, sCNT)
    a("s_cmp_lt_u32 s%d, 31", sCNT)
    a("s_cbranch_scc1 L_loopA")
    a("ds_write_b32 v%d, v%d offset:%d", vZero, vZero, C_TH)
    a("s_waitcnt lgkmcnt(0)")
    rares.append(body(a, "A", False, True, "A2"))
    epilogue(a, "A")
    arrive(a, C_P)
    a("s_add_u32 s%d, s%d, 2", sBP, sBP)
    poll(a, sT2, C_P, "s%d" % sBP, sleep=0)
    a.label("L_out")
    a("s_nop 7")
    for j in range(3):
        a("v_rcp_f32 v%d, v%d", RT + j, L(j))
    a("v_add_u32 v7, s%d, v%d", sKB, vL16)
    a("s_waitcnt vmcnt(0)")
    for u in range(4):
        for j in range(3):
            for t in range(2):
                for r in range(4):
                    a("v_mul_f32 v%d, v%d, v%d", O(2 * u + t, j) + r, O(2 * u + t, j) + r, RT + j)
            d = Q(j, u)
            for t in range(2):
                for k in range(2):
                    a("v_cvt_pk_bf16_f32 v%d, v%d, v%d", d + 2 * t + k, O(2 * u + t, j) + 2 * k, O(2 * u + t, j) + 2 * k + 1)
            a("ds_write_b128 v7, %s offset:%d", vr(d), (u * 3 + j) * 1024)
    a("s_lshl_b32 s%d, s%d, 2", sT1, sWV)
    a("v_mov_b32 v7, s%d", sT1)
    a("s_waitcnt lgkmcnt(0)")
    a("ds_write_b32 v7, v%d offset:%d", vVal, C_O)
    a("s_waitcnt lgkmcnt(0)")
    if prof:
        pstamp(a, 2)
    if SEG[0]:
        for i in range(4):
            a("v_mov_b32 v%d, s%d", vPoll, 82 + i)
            a("buffer_store_dword v%d, v%d, s[92:95], 0 offen offset:%d", vPoll, vZero, 16 + 4 * i)
    a("s_branch K_end")
    for r in rares: r()


vXr = 8
AC = lambda e, j: 12 + (e * 3 + j) * 4
WR = lambda b, i: 108 + b * 32 + i * 4
XF = lambda s, j: 204 + (s * 3 + j) * 4
vWq, vXd0, vXd1 = 5, 6, 7
sXs, sWs, sSL_, sSH_, sQB, sPB, sBT, sXn, sWn = 44, 48, 52, 53, 41, 42, 43, 54, 56

def gen_gemm(a, prof, wflags):
    from gen_v1 import VM
    a.label("R_gemm")
    a("s_setprio %d", PRIO["g"])
    a("s_mov_b32 s%d, 0x05040100", sSL_)
    a("s_mov_b32 s%d, 0x07060302", sSH_)
    a("s_mul_i32 s%d, s%d, 12288", sQB, sJ)
    a("s_add_u32 s%d, s%d, %d", sQB, sQB, SCR)
    a("s_xor_b32 s%d, s%d, 2", sT1, sJ)
    a("s_mul_i32 s%d, s%d, 12288", sPB, sT1)
    a("s_add_u32 s%d, s%d, %d", sPB, sPB, SCR)
    a("v_and_b32 v24, 15, v0")
    a("v_lshrrev_b32 v25, 4, v0")
    a("v_lshlrev_b32 v26, 16, v25")
    a("v_lshl_add_u32 v%d, v24, 4, v26", vWq)
    a("v_lshlrev_b32 v26, 10, v25")
    a("v_lshlrev_b32 v27, 1, v25")
    a("v_xor_b32 v27, v27, v24")
    a("v_lshl_add_u32 v%d, v27, 4, v26", vXd0)
    a("v_xor_b32 v27, 8, v27")
    a("v_lshl_add_u32 v%d, v27, 4, v26", vXd1)
    a("s_and_b32 s32, s%d, 1", sJ)
    a("s_lshr_b32 s33, s%d, 1", sJ)
    a("s_lshl_b32 s36, s33, 9")
    a("s_lshl_b32 s37, s33, 21")
    a("s_mul_i32 s34, s%d, 49152", sB)
    a("s_add_u32 s34, s34, s36")
    a("s_add_u32 s35, s%d, s32", sH0)
    a("s_lshl_b32 s35, s35, 8")
    a("s_add_u32 s35, s35, s37")
    a("s_add_u32 s%d, s72, s34", sXs); a("s_addc_u32 s%d, s73, 0", sXs + 1)
    a("s_mov_b32 s%d, %d", sXs + 2, 49152 - 512); a("s_mov_b32 s%d, 0x20000", sXs + 3)
    a("s_add_u32 s%d, s78, s35", sWs); a("s_addc_u32 s%d, s79, 0", sWs + 1)
    a("s_mov_b32 s%d, %d", sWs + 2, 255 * 8192 + 256); a("s_mov_b32 s%d, 0x20000", sWs + 3)
    vm = VM(a)
    def xdma(p):
        for j in range(3):
            a("s_add_u32 m0, s%d, %d", sQB, j * 4096)
            for i in range(4):
                a("s_mov_b32 s%d, %d", sT1, (p & 1) * 256 + 16384 * j + 3072 * i)
                a("buffer_load_dwordx4 v%d, %s, s%d offen offset:%d%s lds", vXd1 if i & 1 else vXd0, srd(sXs), sT1, i * 1024, wflags)
                vm.issue(("x", p))
    def wops(t):
        ops = []
        for i in range(8):
            g = []
            if t == 8 and i == 0:
                g += ["s_mov_b32 s%d, s%d" % (sWs, sWn), "s_mov_b32 s%d, s%d" % (sWs + 1, sWn + 1)]
            g.append("s_mov_b32 s%d, %d" % (sT1, ((t % 8) * 32 + i) * 8192))
            g.append("buffer_load_dwordx4 %s, v%d, %s, s%d offen%s" % (vr(WR(t % 3, i)), vWq, srd(sWs), sT1, wflags))
            ops.append(g)
        return ops
    def wload(t):
        for g in wops(t):
            for s_ in g: a(s_)
            vm.issue(("w", t))
    xdma(0)
    if OPT["warm"] is not None and OPT["gwait"]:
        poll(a, sT2, C_W, "2", sleep=0)
    for t in range(3): wload(t)
    a("s_mul_i32 s34, s%d, 49152", sB)
    a("s_add_u32 s34, s34, s36")
    a("s_add_u32 s35, s%d, s32", sH0)
    a("s_lshl_b32 s35, s35, 8")
    a("s_add_u32 s35, s35, s37")
    a("s_add_u32 s%d, s4, s34", sXn); a("s_addc_u32 s%d, s5, 0", sXn + 1)
    a("s_add_u32 s%d, s10, s35", sWn); a("s_addc_u32 s%d, s11, 0", sWn + 1)
    a("v_and_b32 v26, 7, v24")
    a("v_lshlrev_b32 v26, 1, v26")
    a("v_xor_b32 v26, v26, v25")
    a("v_lshlrev_b32 v27, 8, v24")
    a("v_add_u32 v27, s%d, v27", sQB)
    for s in range(4):
        a("v_xor_b32 v28, %d, v26", 4 * s)
        a("v_lshl_add_u32 v%d, v28, 4, v27", vXr + s)
    a("v_lshlrev_b32 v26, 9, v25")
    a("v_lshl_add_u32 v26, v24, 3, v26")
    a("v_add_u32 v0, s%d, v26", sPB)
    a("s_mov_b32 s%d, 0", sBT)
    for t in range(16):
        p, s = t >> 2, t & 3
        if s == 0:
            if ("x", p) in vm.q: vm.wait(("x", p))
            for ss in range(4):
                for j in range(3):
                    a("ds_read_b128 %s, v%d offset:%d", vr(XF(ss, j)), vXr + ss, j * 4096)
            a("s_waitcnt lgkmcnt(0)")
            if not (p & 1): xdma(p + 1)
        if ("w", t) in vm.q:
            vm.wait(("w", t))
        for e in range(8):
            wt = 252
            for jj in range(4):
                a("v_perm_b32 v%d, v%d, v%d, s%d", wt + jj, WR(t % 3, 2 * jj + 1) + (e >> 1), WR(t % 3, 2 * jj) + (e >> 1), sSH_ if e & 1 else sSL_)
            for j in range(3):
                a("%s %s, %s, %s, %s", MFMA, vr(AC(e, j)), vr(wt), vr(XF(s, j)), "0" if t % 8 == 0 else vr(AC(e, j)))
        if t % 8 < 7 and t + 3 < 16 and not (t < 8 <= t + 3): wload(t + 3)
        if t % 8 == 7:
            st = t // 8
            a("v_add_u32 v252, s%d, v%d", sQB, vL16)
            a("v_add_u32 v253, s%d, v%d", sPB, vL16)
            a("s_lshl_b32 s%d, s32, 2", sT1)
            a("v_mov_b32 v254, s%d", sT1)
            a.fence()
            a("s_cmp_eq_u32 s33, 1")
            a("s_cbranch_scc1 L_x1b_%d", st)
            for k in range(12):
                a("ds_write_b128 v252, %s offset:%d", vr(AC(4, 0) + 4 * k), k * 1024)
            a("s_branch L_x1c_%d", st)
            a.label("L_x1b_%d" % st)
            for k in range(12):
                a("ds_write_b128 v252, %s offset:%d", vr(AC(0, 0) + 4 * k), k * 1024)
            a("s_waitcnt lgkmcnt(0)")
            for k in range(48):
                a("v_mov_b32 v%d, v%d", AC(0, 0) + k, AC(4, 0) + k)
            a.label("L_x1c_%d" % st)
            a("s_waitcnt lgkmcnt(0)")
            a("s_mov_b64 exec, 1")
            a("ds_add_u32 v254, v%d offset:%d", vVal, C_BAR2)
            a("s_mov_b64 exec, -1")
            lab = "L_xb_%d" % st
            a.label(lab)
            a("ds_read_b32 v%d, v254 offset:%d", vPoll, C_BAR2)
            a("s_waitcnt lgkmcnt(0)")
            a("v_readfirstlane_b32 s%d, v%d", sT2, vPoll)
            a("s_cmp_ge_u32 s%d, %d", sT2, 2 * (st + 1))
            a("s_cbranch_scc0 %s", lab)
            for k in range(12):
                a("ds_read_b128 %s, v253 offset:%d", vr(AC(4, 0) + 4 * k), k * 1024)
            for k in range(12):
                a("s_waitcnt lgkmcnt(%d)", 11 - k)
                for r in range(4):
                    a("v_add_f32 v%d, v%d, v%d", AC(0, 0) + 4 * k + r, AC(0, 0) + 4 * k + r, AC(4, 0) + 4 * k + r)
            for j in range(3):
                for r in range(4):
                    d = AC(4, 0) + (j * 4 + r) * 2
                    for k in range(2):
                        a("v_cvt_pk_bf16_f32 v%d, v%d, v%d", d + k, AC(2 * k, j) + r, AC(2 * k + 1, j) + r)
                    a("ds_write_b64 v0, %s offset:%d", vr(d, 2), j * 2048 + r * 128)
            a("s_waitcnt lgkmcnt(0)")
            a("s_mov_b64 exec, 1")
            a("ds_add_u32 v254, v%d offset:%d", vVal, C_G + 8 * st)
            a("s_mov_b64 exec, -1")
            if st == 0:
                a("s_setprio %d", PRIO["g2"])
                for tt in (8, 9, 10): wload(tt)
                poll(a, sT2, C_A, "2", sleep=1)
                a("s_mov_b32 s%d, s%d", sXs, sXn); a("s_mov_b32 s%d, s%d", sXs + 1, sXn + 1)
                xdma(2)
    if prof: pstamp(a, 1)
    WO = lambda u, i: 108 + u * 32 + i * 4
    BF = lambda j: 236 + 4 * j
    sPs, sZ, sST = 44, 54, 55
    a("s_setprio %d", PRIO["g3"])
    a("v_lshrrev_b32 v8, 4, v%d", vL16)
    a("v_and_b32 v9, 15, v8")
    a("v_lshrrev_b32 v8, 4, v8")
    a("v_lshlrev_b32 v8, 12, v8")
    a("v_lshl_add_u32 v%d, v9, 4, v8", vWq)
    a("s_lshl_b32 s33, s%d, 17", sH0)
    a("s_lshl_b32 s%d, s%d, 8", sT1, sJ)
    a("s_add_u32 s33, s33, s%d", sT1)
    a("s_add_u32 s%d, s12, s33", sWs); a("s_addc_u32 s%d, s13, 0", sWs + 1); a("s_mov_b32 s%d, %d", sWs + 2, 255 * 1024 + 256)
    a("s_lshl_b32 s%d, s%d, 4", sT1, sB)
    a("s_lshr_b32 s%d, s%d, 1", sT2, sH0)
    a("s_add_u32 s%d, s%d, s%d", sT1, sT1, sT2)
    a("s_mul_i32 s%d, s%d, 49152", sT1, sT1)
    a("s_mul_i32 s%d, s%d, 12288", sT2, sJ)
    a("s_add_u32 s%d, s%d, s%d", sT1, sT1, sT2)
    a("s_add_u32 s%d, s20, s%d", sPs, sT1); a("s_addc_u32 s%d, s21, 0", sPs + 1)
    a("s_mov_b32 s%d, 12288", sPs + 2)
    a("s_mov_b32 s%d, 0", sST)
    a("s_mov_b32 s56, %d", SCR); a("s_mov_b32 s57, %d", SCR + NA * 8192); a("s_mov_b32 s58, 8")
    def owload(t):
        for h in range(2):
            a("s_mov_b32 s%d, %d", sT1, t * 32768 + h * 16384)
            for i in range(4):
                a("buffer_load_dwordx4 %s, v%d, %s, s%d offen offset:%d%s", vr(WO(t & 3, 4 * h + i)), vWq, srd(sWs), sT1, i * 1024, OPT["woflags"])
    if OPT.get("fuse"):
        a("s_branch G_out")
        a.label("S_red")
        a("s_cmp_eq_u32 s%d, 3", sJ)
        a("s_cbranch_scc1 S_red_e")
        a("s_mov_b32 s60, s18"); a("s_mov_b32 s61, s19"); a("s_mov_b32 s62, 256"); a("s_mov_b32 s63, 0x20000")
        a("s_lshl_b32 s%d, s%d, 2", sT1, sB)
        a.label("S_r0")
        a("buffer_load_dword v%d, v%d, s[60:63], s%d offen sc0 sc1", vPoll, vZero, sT1)
        a("s_waitcnt vmcnt(0)")
        a("v_readfirstlane_b32 s%d, v%d", sT2, vPoll)
        a("s_cmp_ge_u32 s%d, 16", sT2)
        a("s_cbranch_scc0 S_r0")
        a("s_add_u32 s60, s20, 0x%x", FWS); a("s_addc_u32 s61, s21, 0"); a("s_mov_b32 s62, 4096")
        a("s_lshl_b32 s64, s59, 4")
        a("s_add_u32 s64, s64, s%d", sB)
        a("s_lshl_b32 s%d, s64, 7", sT1)
        a("v_lshrrev_b32 v9, 2, v%d", vL16)
        a("v_and_b32 v9, 60, v9")
        a("s_lshr_b32 s65, s%d, 1", sH0)
        a("s_mul_i32 s65, s65, 3")
        a("s_add_u32 s65, s65, s%d", sJ)
        a("s_mul_i32 s66, s64, %d", 16 * 49152)
        a("s_lshl_b32 s%d, s65, 10", sT2)
        a("s_add_u32 s66, s66, s%d", sT2)
        a("s_add_u32 s68, s20, s66"); a("s_addc_u32 s69, s21, 0"); a("s_mov_b32 s70, %d", 15 * 49152 + 1024); a("s_mov_b32 s71, 0x20000")
        a("s_mul_hi_u32 s66, s65, 0x%x", (2 ** 32 + 11) // 12)
        a("s_mul_i32 s%d, s66, 12", sT2)
        a("s_sub_u32 s65, s65, s%d", sT2)
        a("s_mul_i32 s64, s%d, 48", sB)
        a("s_lshr_b32 s%d, s65, 2", sT2)
        a("s_lshl_b32 s%d, s%d, 4", sT2, sT2)
        a("s_add_u32 s64, s64, s%d", sT2)
        a("s_lshl_b32 s64, s64, 11")
        a("s_lshl_b32 s%d, s59, 10", sT2)
        a("s_add_u32 s64, s64, s%d", sT2)
        a("s_lshl_b32 s%d, s66, 8", sT2)
        a("s_add_u32 s64, s64, s%d", sT2)
        a("s_and_b32 s%d, s65, 3", sT2)
        a("s_lshl_b32 s%d, s%d, 4", sT2, sT2)
        a("s_add_u32 s64, s64, s%d", sT2)
        a("v_lshlrev_b32 v11, 9, v9")
        a("v_lshrrev_b32 v8, 8, v%d", vL16)
        a("v_lshl_add_u32 v11, v8, 6, v11")
        a.label("S_r1")
        a("buffer_load_dword v%d, v9, s[60:63], s%d offen sc0 sc1", vPoll, sT1)
        a("s_waitcnt vmcnt(0)")
        a("v_cmp_ne_u32 vcc, 1, v%d", vPoll)
        a("s_cbranch_vccz S_r2")
        a("s_sleep %d", OPT.get("rsleep", 4))
        a("s_branch S_r1")
        a.label("S_r2")
        for k in range(16):
            a("s_mov_b32 s%d, %d", sT2, k * 49152)
            a("buffer_load_dwordx4 %s, v%d, s[68:71], s%d offen sc0 sc1", vr(12 + 4 * k), vL16, sT2)
        a("s_mov_b32 s60, s16"); a("s_mov_b32 s61, s17"); a("s_mov_b32 s62, %d", 16 * 48 * 1024 * 2)
        for k in range(16):
            a("s_waitcnt vmcnt(%d)", 15 - k)
            for d in range(4):
                r = 12 + 4 * k + d
                if k == 0:
                    a("v_lshlrev_b32 v%d, 16, v%d", 80 + 2 * d, r)
                    a("v_and_b32 v%d, 0xffff0000, v%d", 81 + 2 * d, r)
                else:
                    a("v_lshlrev_b32 v88, 16, v%d", r)
                    a("v_and_b32 v89, 0xffff0000, v%d", r)
                    a("v_add_f32 v%d, v%d, v88", 80 + 2 * d, 80 + 2 * d)
                    a("v_add_f32 v%d, v%d, v89", 81 + 2 * d, 81 + 2 * d)
        for d in range(4):
            a("v_cvt_pk_bf16_f32 v%d, v%d, v%d", 92 + d, 80 + 2 * d, 81 + 2 * d)
        a("buffer_store_dwordx4 v[92:95], v11, s[60:63], s64 offen")
        a("s_waitcnt vmcnt(0)")
        a.label("S_red_e")
        a("s_setpc_b64 s[38:39]")
    a.label("G_out")
    for t in range(4): owload(t)
    if OPT.get("fuse"):
        a("s_cmp_eq_u32 s%d, 0", sST)
        a("s_cbranch_scc1 G_o1")
        a("s_mov_b32 s59, 0")
        a("s_call_b64 s[38:39], S_red")
        a.label("G_o1")
    a("v_mov_b32 v10, s58")
    for t in range(8):
        if t % 4 == 0:
            lab = "G_ow%d" % t
            a.label(lab)
            a("ds_read_b32 v%d, v10 offset:%d", vPoll, C_O + (t // 4) * 4)
            a("s_waitcnt lgkmcnt(0)")
            a("v_readfirstlane_b32 s%d, v%d", sT2, vPoll)
            a("s_cmp_ge_u32 s%d, 1", sT2)
            a("s_cbranch_scc1 %s_e", lab)
            a("s_sleep 4")
            a("s_branch %s", lab)
            a.label(lab + "_e")
            a("v_add_u32 v8, s%d, v%d", 56 + t // 4, vL16)
        for j in range(3):
            a("ds_read_b128 %s, v8 offset:%d", vr(BF(j)), ((t & 3) * 3 + j) * 1024)
        a("s_waitcnt vmcnt(%d)", 24 if t < 5 else 8 * (7 - t))
        for e in range(8):
            wt = 248 + (e & 1) * 4
            for jj in range(4):
                a("v_perm_b32 v%d, v%d, v%d, s%d", wt + jj, WO(t & 3, 2 * jj + 1) + (e >> 1), WO(t & 3, 2 * jj) + (e >> 1), sSH_ if e & 1 else sSL_)
            if e == 0:
                a("s_waitcnt lgkmcnt(0)")
            for j in range(3):
                a("%s %s, %s, %s, %s", MFMA, vr(AC(e, j)), vr(wt), vr(BF(j)), "0" if t == 0 else vr(AC(e, j)))
        if t < 4: owload(t + 4)
    for j in range(3):
        for r in range(4):
            d = 108 + (j * 4 + r) * 4
            for k in range(4):
                a("v_cvt_pk_bf16_f32 v%d, v%d, v%d", d + k, AC(2 * k, j) + r, AC(2 * k + 1, j) + r)
            if r == 0:
                a("s_mov_b32 s%d, %d", sT1, j * 4096)
            a("buffer_store_dwordx4 %s, v%d, %s, s%d offen offset:%d sc0 sc1", vr(d), vL16, srd(sPs), sT1, r * 1024)
    a("s_waitcnt vmcnt(0)")
    if OPT.get("fuse"):
        a("s_mov_b64 exec, 1")
        a("ds_add_rtn_u32 v%d, v%d, v%d offset:%d", vPoll, vZero, vVal, C_F)
        a("s_waitcnt lgkmcnt(0)")
        a("v_readfirstlane_b32 s%d, v%d", sT2, vPoll)
        a("s_and_b32 s%d, s%d, 3", sT2, sT2)
        a("s_cmp_lg_u32 s%d, 3", sT2)
        a("s_cbranch_scc1 G_nf")
        a("s_add_u32 s60, s20, 0x%x", FWS); a("s_addc_u32 s61, s21, 0"); a("s_mov_b32 s62, 4096"); a("s_mov_b32 s63, 0x20000")
        a("s_lshl_b32 s%d, s%d, 7", sT1, sB)
        a("s_lshl_b32 s%d, s%d, 1", sT2, sH0)
        a("s_add_u32 s%d, s%d, s%d", sT1, sT1, sT2)
        a("s_lshl_b32 s%d, s%d, 11", sT2, sST)
        a("s_add_u32 s%d, s%d, s%d", sT1, sT1, sT2)
        a("buffer_store_dword v%d, v%d, s[60:63], s%d offen sc0 sc1", vVal, vZero, sT1)
        a.label("G_nf")
        a("s_mov_b64 exec, -1")
    a("s_cmp_eq_u32 s%d, 1", sST)
    a("s_cbranch_scc1 G_end")
    if prof: pstamp(a, 3)
    if prof: a("s_waitcnt vmcnt(0)")
    a("s_mov_b32 s%d, 1", sST)
    a("s_add_u32 s%d, s80, s33", sWs); a("s_addc_u32 s%d, s81, 0", sWs + 1)
    a("s_add_u32 s%d, s%d, %d", sPs, sPs, 256 * 49152); a("s_addc_u32 s%d, s%d, 0", sPs + 1, sPs + 1)
    a("s_mov_b32 s56, %d", BR0); a("s_mov_b32 s57, %d", BR0 + BSZ); a("s_mov_b32 s58, 0")
    a("s_branch G_out")
    a.label("G_end")
    if OPT.get("fuse"):
        if prof: pstamp(a, 4)
        a("s_mov_b32 s59, 1")
        a("s_call_b64 s[38:39], S_red")
    if prof: pstamp(a, 2)
    a("s_branch K_end")


def gen_k1(a, kn, T=8.0, prof=False, nomem=False, wflags=" nt", oflags=" sc0 sc1"):
    kernel_begin(a, kn)
    a("s_cmp_ge_u32 s2, 256")
    a("s_cbranch_scc1 K_end")
    a("s_load_dwordx8 s[4:11], s[0:1], 0")
    a("s_load_dwordx8 s[72:79], s[0:1], 40")
    a("s_load_dwordx2 s[12:13], s[0:1], 32")
    a("s_load_dwordx4 s[16:19], s[0:1], 80")
    a("s_load_dwordx2 s[80:81], s[0:1], 72")
    a("s_load_dwordx2 s[20:21], s[0:1], 96")
    a("v_lshrrev_b32 v1, 6, v0")
    a("v_and_b32 v0, 63, v0")
    a("v_readfirstlane_b32 s%d, v1", sWV)
    a("v_lshlrev_b32 v%d, 4, v0", vL16)
    a("v_mov_b32 v%d, 0", vZero)
    a("v_mov_b32 v%d, 1", vVal)
    a("v_lshlrev_b32 v%d, 2, v0", vPoll)
    a("ds_write_b32 v%d, v%d", vPoll, vZero)
    a("s_and_b32 s%d, s2, 7", sX)
    a("s_lshr_b32 s%d, s2, 3", sI)
    a("s_lshr_b32 s%d, s%d, 1", sB, sI)
    a("s_and_b32 s%d, s%d, 1", sS2, sI)
    a("s_lshl_b32 s%d, s%d, 2", sH0, sX)
    a("s_lshl_b32 s%d, s%d, 1", sT1, sS2)
    a("s_add_u32 s%d, s%d, s%d", sH0, sH0, sT1)
    a("s_and_b32 s%d, s%d, 3", sJ, sWV)
    a("s_lshr_b32 s%d, s%d, 2", sBB, sI)
    a("s_lshl_b32 s%d, s%d, 1", sBB, sBB)
    a("s_and_b32 s%d, s%d, 3", sHB, sI)
    a("s_lshl_b32 s%d, s%d, 2", sT1, sX)
    a("s_add_u32 s%d, s%d, s%d", sHB, sHB, sT1)
    a("s_waitcnt lgkmcnt(0)")
    if prof:
        a("s_lshl_b32 s100, s2, 3")
        a("s_add_u32 s100, s100, s%d", sWV)
        a("s_lshl_b32 s100, s100, 6")
        a("s_add_u32 s100, s100, 0x2000000")
        a("s_add_u32 s92, s20, s100"); a("s_addc_u32 s93, s21, 0"); a("s_mov_b32 s94, 64"); a("s_mov_b32 s95, 0x20000")
        pstamp(a, 0)
    a("s_barrier")
    a("s_cmp_lt_u32 s%d, 4", sWV)
    a("s_cbranch_scc1 R_att")
    gen_gemm(a, prof, wflags)
    gen_att(a, T, prof, nomem, oflags)
    a.label("K_end")
    a("s_waitcnt vmcnt(0)")
    a("s_endpgm")


def main(fname, which=(0, 1), prio=None, opt=None, g=None, rflags="", **kw):
    import gen_v9
    if prio: PRIO.update(prio)
    if opt: OPT.update(opt)
    if g: GEO.update(g)
    geo()
    a = HAsm()
    if OPT.get("fuse"):
        kn = NAME + "_kernel"
        gen_k1(a, kn, **kw)
        txt = full_file([(kn, (256, 1, 1), (512, 1, 1), LDS_TOTAL)], a.text(), [kernel_desc(kn, 256)])
    else:
        gen_k1(a, "attn_kernel", **kw)
        gen_v9.gen_k2(a, "reduce_kernel", rflags)
        Ls = [("attn_kernel", (256, 1, 1), (512, 1, 1), LDS_TOTAL), ("reduce_kernel", (384, 1, 1), (256, 1, 1), 0)]
        txt = full_file([Ls[i] for i in which], a.text(), [kernel_desc("attn_kernel", 256), kernel_desc("reduce_kernel", 80)])
    open(fname, "w").write(txt)

if __name__ == "__main__":
    OPT["warm"] = None
    OPT["th"] = 4
    main("v14_2k.s")
    main("v14.s", opt=dict(fuse=True))
    main("v14_p.s", prof=True)
```

```python
import sys, math, struct
from asmgen import *
from hz import HAsm
from gen_v1 import f2u, vr, MFMA
import gen_v1

PRIO = dict(b=0, a=1, g=3, g2=2, g3=2)
OPT = dict(warm=' nt', gwait=True, woflags=' nt')
SCR = 1024
GEO = dict(KB=3, VB=2, NA=4)
def geo():
    global KB, VB, NA, BR0, BSZ, LDS_TOTAL
    KB, VB, NA = GEO["KB"], GEO["VB"], GEO["NA"]
    BR0 = SCR + 2 * NA * 8192
    BSZ = (KB + VB) * 8192
    LDS_TOTAL = BR0 + 2 * BSZ
    assert LDS_TOTAL <= 163840
geo()
C_G, C_A, C_BAR, C_P, C_W, C_BAR2, C_W0, C_O, C_TH, C_F, C_PR = 32, 4, 8, 12, 16, 48, 20, 64, 24, 28, 80
FWS = 0x1800000
srd = lambda b: "s[%d:%d]" % (b, b + 3)

vL16, vZero, vPoll, vVal = 1, 2, 3, 4
sWV, sX, sI, sJ, sB, sS2, sH0 = 22, 23, 24, 25, 26, 27, 29
sT1, sT2 = 30, 31
sBB, sHB = 28, 67

def poll(a, sreg, off, cond, sleep=1):
    l0, l1 = a.newlabel("L_p"), a.newlabel("L_q")
    a.label(l0)
    a("ds_read_b32 v%d, v%d offset:%d", vPoll, vZero, off)
    a("s_waitcnt lgkmcnt(0)")
    a("v_readfirstlane_b32 s%d, v%d", sreg, vPoll)
    a("s_cmp_ge_u32 s%d, %s", sreg, cond)
    a("s_cbranch_scc1 %s", l1)
    if sleep: a("s_sleep %d", sleep)
    a("s_branch %s", l0)
    a.label(l1)

def arrive(a, off, wait=True):
    if wait: a("s_waitcnt lgkmcnt(0)")
    a("s_mov_b64 exec, 1")
    a("ds_add_u32 v%d, v%d offset:%d", vZero, vVal, off)
    a("s_mov_b64 exec, -1")

def pstamp(a, idx):
    a("s_memrealtime s[98:99]")
    a("s_waitcnt lgkmcnt(0)")
    a("v_mov_b32 v%d, s98", vPoll)
    a("buffer_store_dword v%d, v%d, s[92:95], 0 offen offset:%d", vPoll, vZero, 4 * idx)

vD = 5
vKr, vVr, vM = 8, 12, 20
O = lambda e, j: 24 + (e * 3 + j) * 4
L = lambda j: 120 + j * 4
S = lambda t, j: 132 + (t * 3 + j) * 4
Q = lambda j, s: 156 + (j * 4 + s) * 4
ONES = 204
F = lambda k: 208 + k * 4
P = lambda j: 240 + j * 4
MX0, MX1 = 252, 253
RT = 240
sSK, sSV, sO = 36, 40, 44
sC, sT, sCNT = 48, 49, 50
sKO, sVO, sKL, sVL, sKB, sVB = 51, 52, 53, 54, 55, 56
sKS, sVS, sDK, sDV, sBP, sKN, sVN, sTH = 57, 58, 59, 60, 61, 64, 65, 66

def emit(a, groups):
    for g in groups:
        for s in g: a(s)
def adv3(reg):
    lim = sKN if reg in (sKL, sKS) else sVN
    return ["s_add_u32 s%d, s%d, 8192" % (reg, reg), "s_cmp_eq_u32 s%d, s%d" % (reg, lim), "s_cselect_b32 s%d, 0, s%d" % (reg, reg)]
def unit(isV):
    which, soff, sl, sb = (sSV, sVO, sVL, sVB) if isV else (sSK, sKO, sKL, sKB)
    ops = []
    for half in range(2):
        for i in range(4):
            g = []
            if i == 0:
                if half == 0:
                    g.append("s_add_u32 m0, s%d, s%d" % (sl, sb))
                    g.append("s_nop 0")
                else:
                    g.append("s_add_u32 m0, m0, 4096")
                    g.append("s_add_u32 s%d, s%d, 4096" % (soff, soff))
            g.append("buffer_load_dwordx4 v%d, %s, s%d offen offset:%d nt lds" % (vD + (i & 1), srd(which), soff, i * 1024))
            ops.append(g)
    ops.append(["s_add_u32 s%d, s%d, 4096" % (soff, soff)] + adv3(sl))
    return ops
def kread(k): return "ds_read_b128 %s, v%d offset:%d" % (vr(F(k)), vKr + (k & 3), (k >> 2) * 4096)
def vread(e): return ["ds_read_b64_tr_b16 %s, v%d offset:%d" % (vr(F(e) + 2 * hh, 2), vVr + e, hh * 4096) for hh in range(2)]
def smf(k): return ["%s %s, %s, %s, %s" % (MFMA, vr(S(k >> 2, j)), vr(F(k)), vr(Q(j, k & 3)), "0" if (k & 3) == 0 else vr(S(k >> 2, j))) for j in range(3)]
def pvf(e):
    if e < 8:
        return ["%s %s, %s, %s, %s" % (MFMA, vr(O(e, j)), vr(F(e)), vr(P(j)), vr(O(e, j))) for j in range(3)]
    return ["%s %s, %s, %s, %s" % (MFMA, vr(L(j)), vr(ONES), vr(P(j)), vr(L(j))) for j in range(3)]
def fma(t): return ["v_fma_f32 v%d, v%d, s%d, -v%d" % (S(t, j) + r, S(t, j) + r, sC, vM + j) for j in range(3) for r in range(4)]
def mx(t):
    r = [S(t, j) + i for j in range(3) for i in range(4)]
    d = MX0 if t == 0 else MX1
    out = ["v_max3_f32 v%d, v%d, v%d, v%d" % (d, r[0], r[1], r[2])]
    for k in range(3, 11, 2):
        out.append("v_max3_f32 v%d, v%d, v%d, v%d" % (d, d, r[k], r[k + 1]))
    out.append(("v_max_f32 v%d, v%d, v%d" % (d, d, r[11])) if t == 0 else ("v_max3_f32 v%d, v%d, v%d, v%d" % (d, d, r[11], MX0)))
    return out
def fmamx(t):
    f, m = fma(t), mx(t)
    return f[0:5] + [m[0]] + f[5:7] + [m[1]] + f[7:9] + [m[2]] + f[9:11] + [m[3]] + f[11:12] + [m[4], m[5]]
def exps(t): return ["v_exp_f32 v%d, v%d" % (S(t, j) + r, S(t, j) + r) for j in range(3) for r in range(4)]
def cvts(t): return ["v_cvt_pk_bf16_f32 v%d, v%d, v%d" % (P(j) + 2 * t + k, S(t, j) + 2 * k, S(t, j) + 2 * k + 1) for j in range(3) for k in range(2)]
def weave(a, mf, fill):
    n = len(mf); k = 0
    for i, m in enumerate(mf):
        a(m)
        tgt = (len(fill) * (i + 1)) // n
        while k < tgt:
            a(fill[k]); k += 1
def rowmax(a):
    for j in range(3):
        d = RT + j
        a("v_max3_f32 v%d, v%d, v%d, v%d", d, S(0, j), S(0, j) + 1, S(0, j) + 2)
        a("v_max3_f32 v%d, v%d, v%d, v%d", d, d, S(0, j) + 3, S(1, j))
        a("v_max3_f32 v%d, v%d, v%d, v%d", d, d, S(1, j) + 1, S(1, j) + 2)
        a("v_max_f32 v%d, v%d, v%d", d, d, S(1, j) + 3)
    for sw in ("v_permlane32_swap_b32", "v_permlane16_swap_b32"):
        for j in range(3): a("v_mov_b32 v%d, v%d", RT + 3 + j, RT + j)
        for j in range(3): a("%s v%d, v%d", sw, RT + j, RT + 3 + j)
        a("s_nop 1")
        for j in range(3): a("v_max_f32 v%d, v%d, v%d", RT + j, RT + j, RT + 3 + j)
def shift_x(a):
    for j in range(3):
        a("v_add_f32 v%d, v%d, v%d", vM + j, vM + j, RT + j)
        for t in range(2):
            for r in range(4):
                a("v_sub_f32 v%d, v%d, v%d", S(t, j) + r, S(t, j) + r, RT + j)
def rescale(a):
    rowmax(a)
    for j in range(3):
        a("v_max_f32 v%d, 0, v%d", RT + j, RT + j)
        a("v_exp_f32 v%d, -v%d", RT + 3 + j, RT + j)
    shift_x(a)
    for j in range(3):
        for e in range(8):
            for r in range(4):
                a("v_mul_f32 v%d, v%d, v%d", O(e, j) + r, O(e, j) + r, RT + 3 + j)
        for r in range(4):
            a("v_mul_f32 v%d, v%d, v%d", L(j) + r, L(j) + r, RT + 3 + j)
def step(sreg, sd, regs_):
    return (["s_mov_b32 s%d, s%d" % (sd, sreg)] + adv3(sreg) + ["s_sub_u32 s%d, s%d, s%d" % (sd, sreg, sd)],
            ["v_add_u32 v%d, s%d, v%d" % (r, sd, r) for r in regs_])

SEG = [False]
def seg(a, i):
    if not SEG[0]: return
    a("s_memtime s[98:99]")
    a("s_waitcnt lgkmcnt(0)")
    a("s_sub_u32 s100, s98, s96")
    a("s_add_u32 s%d, s%d, s100", 82 + i, 82 + i)
    a("s_mov_b32 s96, s98")

def throttle(a):
    if OPT.get("th") is None: return
    lab = a.newlabel("L_th")
    a("s_cmp_eq_u32 s%d, 0", sTH)
    a("s_cbranch_scc1 %s", lab)
    if OPT.get("ctl") and OPT["ctl"]["th"] != OPT["th"]:
        hi, lo = max(OPT["th"], OPT["ctl"]["th"]), min(OPT["th"], OPT["ctl"]["th"])
        a("s_waitcnt vmcnt(%d)", hi)
        a("s_cmp_eq_u32 s%d, %d", sTH, 1 if hi == OPT["th"] else 2)
        a("s_cbranch_scc1 %s", lab)
        a("s_waitcnt vmcnt(%d)", lo)
    else:
        a("s_waitcnt vmcnt(%d)", OPT["th"])
    a.label(lab)

def body(a, kind, first, last, tag):
    B = kind == "B"
    if B and not first:
        seg(a, 0)
        a("s_waitcnt vmcnt(%d)", 16 * (VB - 1))
        seg(a, 1)
    ksc, kx = step(sKS, sDK, range(vKr, vKr + 4))
    for s in ksc: a(s)
    xi = unit(0) if B else []
    e1 = [] if first else exps(1)
    c1 = [] if first else cvts(1)
    f0 = fmamx(0)
    fills = [e1[0:4], e1[4:8], e1[8:12], c1, kx, f0[0:6], f0[6:12], f0[12:18]]
    for k in range(8):
        a("s_waitcnt lgkmcnt(%d)", (7 - k) if first else (7 + k) if k < 3 else 6 if k == 3 else 13)
        weave(a, smf(k), fills[k])
        if not first:
            for s in vread(k): a(s)
        if first and k == 3:
            a("s_waitcnt lgkmcnt(0)")
        if k == 3 and xi: throttle(a)
        if k >= 3 and xi:
            n = 2 if k < 7 else len(xi)
            emit(a, xi[:n]); xi = xi[n:]
    f1 = fmamx(1)
    vsc, vx = step(sVS, sDV, range(vVr, vVr + 8))
    def sync_arrive():
        if not B:
            seg(a, 0)
            a("s_waitcnt vmcnt(%d) lgkmcnt(0)", 8 * (NA - 2))
            seg(a, 1)
            arrive(a, C_P, wait=False)
            a("s_add_u32 s%d, s%d, 2", sBP, sBP)
    def sync_wait():
        seg(a, 2)
        sync_wait2()
        seg(a, 3)
    def sync_wait2():
        if B:
            n = 2 * KB - 1
            if first and 1 - KB + VB - 1 < 0: n -= 1
            a("s_waitcnt vmcnt(%d)", 8 * n)
        else:
            poll(a, sT2, C_P, "s%d" % sBP, sleep=0)
    if first:
        sync_arrive()
        if B: emit(a, unit(1))
        a("s_nop 4")
        for s in fma(1): a(s)
        sync_wait()
        for k in range(8): a(kread(k))
        if not B:
            a("s_and_b32 s%d, s%d, 1", sT1, sWV)
            a("s_cbranch_scc1 L_af_%s", tag)
            emit(a, unit(0))
            a.label("L_af_" + tag)
        rowmax(a)
        shift_x(a)
        for s in exps(0): a(s)
        for s in cvts(0): a(s)
        return
    a("s_waitcnt lgkmcnt(14)")
    for s in vsc: a(s)
    weave(a, pvf(0), vx[0:4])
    a("s_waitcnt lgkmcnt(12)")
    weave(a, pvf(1), f1[0:8])
    if B and OPT.get("th") is not None:
        if OPT.get("ctl") or OPT.get("loc"):
            a("v_mov_b32 v23, s%d", sCNT)
            a("ds_write_b32 v7, v23 offset:%d", C_PR)
        a("ds_read_b32 v%d, v%d offset:%d", vPoll, vZero, C_TH)
    if not B and OPT.get("loc") and not last:
        a("ds_read_b32 v%d, v%d offset:%d", vPoll, vZero, C_PR)
    a("s_waitcnt lgkmcnt(0)")
    if B and OPT.get("th") is not None:
        a("v_readfirstlane_b32 s%d, v%d", sTH, vPoll)
    if not B and OPT.get("loc") and not last:
        al, be = OPT["loc"]
        a("v_readfirstlane_b32 s%d, v%d", sT1, vPoll)
        a("s_mul_i32 s%d, s%d, %d", sT2, sCNT, al)
        a("s_lshl_b32 s%d, s%d, 4", sT1, sT1)
        a("s_add_i32 s%d, s%d, %d", sT1, sT1, 32 * al + 16 * be - 512)
        a("s_cmp_gt_i32 s%d, s%d", sT1, sT2)
        a("s_cselect_b32 s%d, 1, 0", sT1)
        a("v_mov_b32 v23, s%d", sT1)
        a("ds_write_b32 v%d, v23 offset:%d", vZero, C_TH)
    sync_arrive()
    weave(a, pvf(2), f1[8:18])
    a("v_cmp_nge_f32 vcc, s%d, v%d", sT, MX1)
    def rest(fill):
        yi = unit(1) if B else []
        if B: throttle(a)
        emit(a, yi[:4])
        weave(a, pvf(3), fill[0:2] + vx[4:8])
        emit(a, yi[4:])
        sync_wait()
        if not last:
            for k in range(4): a(kread(k))
        zi = [] if B else unit(0)
        for e in range(4, 9):
            weave(a, pvf(e), fill[2 * (e - 3):2 * (e - 2)])
            if e < 8 and not last:
                a(kread(e))
            n = 2 if e < 8 else len(zi)
            emit(a, zi[:n]); zi = zi[n:]
    a("s_cbranch_vccnz L_rare_%s", tag)
    rest(exps(0))
    a.label("L_join_" + tag)
    a("s_nop 0")
    for s in cvts(0): a(s)
    def rare():
        a.label("L_rare_" + tag)
        rest([])
        a("s_nop 7")
        rescale(a)
        for s in exps(0): a(s)
        a("s_branch L_join_%s", tag)
    return rare

def epilogue(a, kind):
    if kind == "B":
        a("s_waitcnt vmcnt(%d)", 16 * (VB - 1))
    for e in range(7):
        for s in vread(e): a(s)
    for s in exps(1): a(s)
    a("s_waitcnt lgkmcnt(6)")
    for s in vread(7): a(s)
    for s in cvts(1): a(s)
    a("s_waitcnt lgkmcnt(0)")
    for e in range(9):
        for s in pvf(e): a(s)

def gen_att(a, T, prof, nomem, oflags):
    a.label("R_att")
    a("v_and_b32 v252, 15, v0")
    a("v_lshrrev_b32 v253, 4, v0")
    a("v_lshlrev_b32 v255, 8, v253")
    a("v_lshlrev_b32 v254, 1, v253")
    a("v_xor_b32 v254, v254, v252")
    for i in range(2):
        a("v_xor_b32 v24, %d, v254", 8 * i)
        a("v_lshl_add_u32 v%d, v24, 4, v255", vD + i)
    NR = 0 if nomem else 0x40000
    a("s_mov_b32 s%d, %d", sSK + 2, NR); a("s_mov_b32 s%d, 0x20000", sSK + 3)
    a("s_mov_b32 s%d, %d", sSV + 2, NR); a("s_mov_b32 s%d, 0x20000", sSV + 3)
    for r in (sKO, sVO, sKL, sVL, sKS, sVS, sBP, sTH):
        a("s_mov_b32 s%d, 0", r)
    a("s_and_b32 s%d, s%d, 1", sT1, sWV)
    a("s_lshl_b32 s32, s%d, 5", sB)
    a("s_add_u32 s32, s32, s%d", sH0)
    a("s_add_u32 s32, s32, s%d", sT1)
    a("s_cmp_ge_u32 s%d, 2", sWV)
    a("s_cbranch_scc1 L_setA")
    a("s_setprio %d", PRIO["b"])
    a("s_lshl_b32 s33, s32, 18")
    a("s_add_u32 s%d, s74, s33", sSK); a("s_addc_u32 s%d, s75, 0", sSK + 1)
    a("s_add_u32 s%d, s76, s33", sSV); a("s_addc_u32 s%d, s77, 0", sSV + 1)
    a("s_mul_i32 s%d, s%d, %d", sKB, sWV, BSZ)
    a("s_add_u32 s%d, s%d, %d", sKB, sKB, BR0)
    a("s_add_u32 s%d, s%d, %d", sVB, sKB, KB * 8192)
    a("s_mov_b32 s%d, %d", sKN, KB * 8192); a("s_mov_b32 s%d, %d", sVN, VB * 8192)
    init = []
    for i in range(-max(KB, VB), 0):
        if i + KB >= 0: init.append(0)
        if i + VB - 1 >= 0: init.append(1)
    if OPT["warm"] is not None:
        poll(a, sT2, C_W if OPT.get("pflate") else C_W0, "2", sleep=0)
    for c in init:
        emit(a, unit(c))
    a("s_mov_b32 s34, s%d", sKB); a("s_mov_b32 s35, s%d", sVB)
    a("s_branch L_set")
    a.label("L_setA")
    if OPT.get("fuse"):
        a("s_cmp_lg_u32 s%d, 2", sWV)
        a("s_cbranch_scc1 L_noinit")
        a("s_add_u32 s60, s20, 0x%x", FWS); a("s_addc_u32 s61, s21, 0"); a("s_mov_b32 s62, 4096"); a("s_mov_b32 s63, 0x20000")
        a("s_lshl_b32 s%d, s%d, 7", sT1, sB)
        a("s_lshl_b32 s%d, s%d, 1", sT2, sH0)
        a("s_add_u32 s%d, s%d, s%d", sT1, sT1, sT2)
        a("s_mov_b64 exec, 1")
        a("buffer_store_dword v%d, v%d, s[60:63], s%d offen sc0 sc1", vZero, vZero, sT1)
        a("buffer_store_dword v%d, v%d, s[60:63], s%d offen offset:2048 sc0 sc1", vZero, vZero, sT1)
        a("s_waitcnt vmcnt(0)")
        a("s_mov_b32 s60, s18"); a("s_mov_b32 s61, s19"); a("s_mov_b32 s62, 256")
        a("s_lshl_b32 s%d, s%d, 2", sT1, sB)
        a("buffer_atomic_add v%d, v%d, s[60:63], s%d offen sc1", vVal, vZero, sT1)
        a("s_mov_b64 exec, -1")
        a("s_waitcnt vmcnt(0)")
        a("s_mov_b32 s%d, 0", sBP)
        a.label("L_noinit")
    if OPT["warm"] is not None:
        wf = OPT["warm"]
        a("s_setprio 3")
        a("s_mov_b32 s63, 0x20000")
        a("s_and_b32 s33, s%d, 1", sWV)
        for br, wp in enumerate((78, 10)):
            if br == 1:
                if not OPT.get("warmA"): break
                poll(a, sT2, C_A, "1", sleep=4)
            a("s_mov_b32 s60, s%d", wp); a("s_mov_b32 s61, s%d", wp + 1); a("s_mov_b32 s62, 0x400000")
            a("s_lshl_b32 s%d, s%d, 17", sT1, sI)
            a("s_lshl_b32 s%d, s33, 16", sT2)
            a("s_add_u32 s%d, s%d, s%d", sT1, sT1, sT2)
            a("s_lshl_b32 s%d, s%d, 10", sT2, sX)
            a("s_add_u32 s%d, s%d, s%d", sT1, sT1, sT2)
            for k in range(8):
                a("buffer_load_dwordx4 %s, v%d, s[60:63], s%d offen%s", vr(24 + 4 * k), vL16, sT1, wf)
                a("s_add_u32 s%d, s%d, 8192", sT1, sT1)
            if br == 0:
                arrive(a, C_W0)
            a("s_waitcnt vmcnt(0)")
            if br == 0:
                arrive(a, C_W)
                if prof: pstamp(a, 3)
        a("s_mov_b32 s%d, 0", sBP)
    if OPT.get("l2pf"):
        nt_, depth = OPT["l2pf"]
        a("s_setprio 0")
        a("s_lshl_b32 s33, s32, 18")
        a("s_mov_b32 s62, 0x40000"); a("s_mov_b32 s63, 0x20000")
        a("s_mov_b32 s70, 0x40000"); a("s_mov_b32 s71, 0x20000")
        a("s_add_u32 s60, s74, s33"); a("s_addc_u32 s61, s75, 0")
        a("s_add_u32 s68, s76, s33"); a("s_addc_u32 s69, s77, 0")
        for d in range(OPT.get("l2delay", 0)): a("s_sleep 32")
        n = 0
        for t in range(nt_):
            for isV in (1, 0):
                tile = t + (VB - 1 if isV else KB)
                for k in range(8):
                    if k % 4 == 0:
                        a("s_mov_b32 s%d, %d", sT1, tile * 8192 + k * 1024)
                    a("buffer_load_dwordx4 %s, v%d, %s, s%d offen offset:%d nt", vr(24 + 4 * (n % 32)), vL16, "s[68:71]" if isV else "s[60:63]", sT1, (k % 4) * 1024)
                    n += 1
                    if n % 4 == 0 and n >= depth:
                        a("s_waitcnt vmcnt(%d)", depth - 4)
        a("s_waitcnt vmcnt(0)")
        a("s_mov_b32 s%d, 0", sBP)
    a("s_setprio %d", PRIO["a"])
    a("s_lshl_b32 s33, s%d, 3", sB)
    a("s_add_u32 s33, s33, s%d", sX)
    a("s_lshl_b32 s33, s33, 18")
    a("s_cmp_eq_u32 s%d, 3", sWV)
    a("s_cselect_b32 s%d, s8, s6", sSK); a("s_cselect_b32 s%d, s9, s7", sSK + 1)
    a("s_mov_b32 s34, %d", SCR); a("s_mov_b32 s35, %d", SCR + NA * 8192)
    a("s_mov_b32 s%d, %d", sKN, NA * 8192); a("s_mov_b32 s%d, %d", sVN, NA * 8192)
    a("s_cselect_b32 s%d, s35, s34", sKB)
    a("s_add_u32 s%d, s%d, s33", sSK, sSK); a("s_addc_u32 s%d, s%d, 0", sSK + 1, sSK + 1)
    a("s_mov_b32 s%d, s%d", sSV, sSK); a("s_mov_b32 s%d, s%d", sSV + 1, sSK + 1); a("s_mov_b32 s%d, s%d", sVB, sKB)
    a.label("L_set")
    a("s_mov_b32 s%d, 0x%x", sC, f2u(128 ** -0.5 * math.log2(math.e)))
    a("s_mov_b32 s%d, 0x%x", sT, f2u(T))
    a("v_and_b32 v254, 7, v252")
    a("v_lshlrev_b32 v254, 1, v254")
    a("v_xor_b32 v254, v254, v253")
    a("v_lshlrev_b32 v255, 8, v252")
    a("v_add_u32 v255, s34, v255")
    for s in range(4):
        a("v_xor_b32 v24, %d, v254", 4 * s)
        a("v_lshl_add_u32 v%d, v24, 4, v255", vKr + s)
    a("v_lshrrev_b32 v254, 2, v252")
    a("v_lshl_add_u32 v254, v253, 2, v254")
    a("v_and_b32 v255, 3, v252")
    a("v_lshlrev_b32 v255, 3, v255")
    a("v_lshl_add_u32 v255, v254, 8, v255")
    a("v_add_u32 v255, s35, v255")
    a("v_and_b32 v254, 7, v254")
    for e in range(8):
        a("v_xor_b32 v24, %d, v254", e)
        a("v_lshl_add_u32 v%d, v24, 5, v255", vVr + e)
    for k in range(4):
        a("v_mov_b32 v%d, 0x3f803f80", ONES + k)
    for r in range(24, 132):
        a("v_mov_b32 v%d, 0", r)
    for j in range(3):
        a("v_mov_b32 v%d, 0", vM + j)
    a("s_mov_b32 s%d, 1", sCNT)
    a("s_lshl_b32 s%d, s%d, 2", sT1, sWV)
    a("v_mov_b32 v7, s%d", sT1)
    a.label("L_wq")
    a("ds_read_b32 v%d, v7 offset:%d", vPoll, C_G)
    a("s_waitcnt lgkmcnt(0)")
    a("v_readfirstlane_b32 s%d, v%d", sT2, vPoll)
    a("s_cmp_ge_u32 s%d, 2", sT2)
    a("s_cbranch_scc1 L_wq2")
    a("s_sleep 2")
    a("s_branch L_wq")
    a.label("L_wq2")
    a("s_and_b32 s%d, s%d, 1", sT1, sWV)
    a("s_mul_i32 s%d, s%d, 12288", sT1, sT1)
    a("v_lshrrev_b32 v7, 1, v%d", vL16)
    a("v_add_u32 v7, s%d, v7", sT1)
    for f in range(12):
        a("ds_read_b64 %s, v7 offset:%d", vr(Q(0, 0) + 4 * f, 2), SCR + 24576 + f * 512)
        a("ds_read_b64 %s, v7 offset:%d", vr(Q(0, 0) + 4 * f + 2, 2), SCR + f * 512)
        if f == 6: a("s_waitcnt lgkmcnt(4)")
    arrive(a, C_A)
    if prof: pstamp(a, 1)
    rares = []
    if SEG[0]:
        a("s_mov_b32 s96, 0")
        for i in range(6): a("s_mov_b32 s%d, 0", 82 + i)
    a("s_cmp_ge_u32 s%d, 2", sWV)
    a("s_cbranch_scc1 L_runA")
    a("s_lshl_b32 s%d, s%d, 2", sT1, sWV)
    a("v_mov_b32 v7, s%d", sT1)
    a("s_waitcnt vmcnt(%d)", 8 * (len(init) - 1 - init.index(0)))
    for k in range(8): a(kread(k))
    if prof: a("s_waitcnt vmcnt(0)")
    seg(a, 5)
    body(a, "B", True, False, "B0")
    a.label("L_loopB")
    rares.append(body(a, "B", False, False, "B1"))
    a("s_add_u32 s%d, s%d, 1", sCNT, sCNT)
    a("s_cmp_lt_u32 s%d, 31", sCNT)
    a("s_cbranch_scc1 L_loopB")
    rares.append(body(a, "B", False, True, "B2"))
    epilogue(a, "B")
    a("s_branch L_out")
    a.label("L_runA")
    poll(a, sT2, C_A, "4", sleep=2)
    a("ds_write_b32 v%d, v%d offset:%d", vZero, vVal, C_TH)
    for k in range(NA): emit(a, unit(0))
    a("s_waitcnt vmcnt(%d)", 8 * (NA - 1))
    arrive(a, C_P)
    a("s_add_u32 s%d, s%d, 2", sBP, sBP)
    poll(a, sT2, C_P, "s%d" % sBP, sleep=0)
    for k in range(8): a(kread(k))
    seg(a, 5)
    body(a, "A", True, False, "A0")
    a.label("L_loopA")
    rares.append(body(a, "A", False, False, "A1"))
    a("s_add_u32 s%d, s%d, 1", sCNT, sCNT)
    a("s_cmp_lt_u32 s%d, 31", sCNT)
    a("s_cbranch_scc1 L_loopA")
    a("ds_write_b32 v%d, v%d offset:%d", vZero, vZero, C_TH)
    a("s_waitcnt lgkmcnt(0)")
    rares.append(body(a, "A", False, True, "A2"))
    epilogue(a, "A")
    arrive(a, C_P)
    a("s_add_u32 s%d, s%d, 2", sBP, sBP)
    poll(a, sT2, C_P, "s%d" % sBP, sleep=0)
    a.label("L_out")
    a("s_nop 7")
    for j in range(3):
        a("v_rcp_f32 v%d, v%d", RT + j, L(j))
    a("v_add_u32 v7, s%d, v%d", sKB, vL16)
    a("s_waitcnt vmcnt(0)")
    for u in range(4):
        for j in range(3):
            for t in range(2):
                for r in range(4):
                    a("v_mul_f32 v%d, v%d, v%d", O(2 * u + t, j) + r, O(2 * u + t, j) + r, RT + j)
            d = Q(j, u)
            for t in range(2):
                for k in range(2):
                    a("v_cvt_pk_bf16_f32 v%d, v%d, v%d", d + 2 * t + k, O(2 * u + t, j) + 2 * k, O(2 * u + t, j) + 2 * k + 1)
            a("ds_write_b128 v7, %s offset:%d", vr(d), (u * 3 + j) * 1024)
    a("s_lshl_b32 s%d, s%d, 2", sT1, sWV)
    a("v_mov_b32 v7, s%d", sT1)
    a("s_waitcnt lgkmcnt(0)")
    a("ds_write_b32 v7, v%d offset:%d", vVal, C_O)
    a("s_waitcnt lgkmcnt(0)")
    if prof:
        pstamp(a, 2)
    if OPT.get("fuse"):
        a("s_cmp_lt_u32 s%d, 2", sWV)
        a("s_cbranch_scc1 K_end")
        a("s_mov_b32 s59, 0")
        a("s_sub_u32 s37, s%d, 2", sWV)
        a("s_call_b64 s[38:39], S_red")
        a("s_add_u32 s37, s37, 2")
        a("s_call_b64 s[38:39], S_red")
    if OPT.get("ctl"):
        c = OPT["ctl"]
        a("s_cmp_lg_u32 s%d, 2", sWV)
        a("s_cbranch_scc1 K_end")
        a("s_setprio 3")
        a("s_mov_b32 s60, s18"); a("s_mov_b32 s61, s19"); a("s_mov_b32 s62, 256"); a("s_mov_b32 s63, 0x20000")
        a("s_mov_b32 s40, 0")
        a("s_mov_b32 s41, 0x100000")
        a("s_mov_b64 exec, 1")
        a.label("C_loop")
        a("ds_read_b64 v[8:9], v%d offset:%d", vZero, C_PR)
        a("ds_read_b64 v[10:11], v%d offset:%d", vZero, C_O)
        a("s_waitcnt lgkmcnt(0)")
        a("v_add_u32 v8, v8, v9")
        a("v_or_b32 v10, v10, v11")
        a("v_readfirstlane_b32 s42, v8")
        a("v_readfirstlane_b32 s43, v10")
        a("s_cmp_lg_u32 s43, 0")
        a("s_cselect_b32 s42, 64, s42")
        a("s_sub_u32 s44, s42, s40")
        a("s_add_u32 s44, s44, s41")
        a("s_mov_b32 s40, s42")
        a("s_mov_b32 s41, 0")
        a("v_mov_b32 v12, s44")
        a("buffer_atomic_add v12, v%d, s[60:63], 0 offen offset:128 sc0 sc1", vZero)
        a("s_waitcnt vmcnt(0)")
        a("s_cmp_lg_u32 s43, 0")
        a("s_cbranch_scc1 C_done")
        a("v_readfirstlane_b32 s45, v12")
        a("s_add_u32 s45, s45, s44")
        a("s_lshr_b32 s46, s45, 20")
        a("s_and_b32 s45, s45, 0xfffff")
        a("s_sub_u32 s47, s42, %d", c["margin"])
        a("s_mul_i32 s47, s47, s46")
        a("s_cmp_gt_u32 s47, s45")
        a("s_cselect_b32 s47, 2, 0")
        a("v_mov_b32 v12, s47")
        a("ds_write_b32 v%d, v12 offset:%d", vZero, C_TH)
        for k in range(c["sleep"]): a("s_sleep 32")
        a("s_branch C_loop")
        a.label("C_done")
        a("ds_write_b32 v%d, v%d offset:%d", vZero, vZero, C_TH)
        a("s_waitcnt lgkmcnt(0)")
        a("s_mov_b64 exec, -1")
    if SEG[0]:
        for i in range(4):
            a("v_mov_b32 v%d, s%d", vPoll, 82 + i)
            a("buffer_store_dword v%d, v%d, s[92:95], 0 offen offset:%d", vPoll, vZero, 16 + 4 * i)
    a("s_branch K_end")
    for r in rares: r()


vXr = 8
AC = lambda e, j: 12 + (e * 3 + j) * 4
WR = lambda b, i: 108 + b * 32 + i * 4
XF = lambda s, j: 204 + (s * 3 + j) * 4
vWq, vXd0, vXd1 = 5, 6, 7
sXs, sWs, sSL_, sSH_, sQB, sPB, sBT, sXn, sWn = 44, 48, 52, 53, 41, 42, 43, 54, 56

def gen_gemm(a, prof, wflags):
    from gen_v1 import VM
    a.label("R_gemm")
    a("s_setprio %d", PRIO["g"])
    a("s_mov_b32 s%d, 0x05040100", sSL_)
    a("s_mov_b32 s%d, 0x07060302", sSH_)
    a("s_mul_i32 s%d, s%d, 12288", sQB, sJ)
    a("s_add_u32 s%d, s%d, %d", sQB, sQB, SCR)
    a("s_xor_b32 s%d, s%d, 2", sT1, sJ)
    a("s_mul_i32 s%d, s%d, 12288", sPB, sT1)
    a("s_add_u32 s%d, s%d, %d", sPB, sPB, SCR)
    a("v_and_b32 v24, 15, v0")
    a("v_lshrrev_b32 v25, 4, v0")
    a("v_lshlrev_b32 v26, 16, v25")
    a("v_lshl_add_u32 v%d, v24, 4, v26", vWq)
    a("v_lshlrev_b32 v26, 10, v25")
    a("v_lshlrev_b32 v27, 1, v25")
    a("v_xor_b32 v27, v27, v24")
    a("v_lshl_add_u32 v%d, v27, 4, v26", vXd0)
    a("v_xor_b32 v27, 8, v27")
    a("v_lshl_add_u32 v%d, v27, 4, v26", vXd1)
    a("s_and_b32 s32, s%d, 1", sJ)
    a("s_lshr_b32 s33, s%d, 1", sJ)
    a("s_lshl_b32 s36, s33, 9")
    a("s_lshl_b32 s37, s33, 21")
    a("s_mul_i32 s34, s%d, 49152", sB)
    a("s_add_u32 s34, s34, s36")
    a("s_add_u32 s35, s%d, s32", sH0)
    a("s_lshl_b32 s35, s35, 8")
    a("s_add_u32 s35, s35, s37")
    a("s_add_u32 s%d, s72, s34", sXs); a("s_addc_u32 s%d, s73, 0", sXs + 1)
    a("s_mov_b32 s%d, %d", sXs + 2, 49152 - 512); a("s_mov_b32 s%d, 0x20000", sXs + 3)
    a("s_add_u32 s%d, s78, s35", sWs); a("s_addc_u32 s%d, s79, 0", sWs + 1)
    a("s_mov_b32 s%d, %d", sWs + 2, 255 * 8192 + 256); a("s_mov_b32 s%d, 0x20000", sWs + 3)
    vm = VM(a)
    def xdma(p):
        for j in range(3):
            a("s_add_u32 m0, s%d, %d", sQB, j * 4096)
            for i in range(4):
                a("s_mov_b32 s%d, %d", sT1, (p & 1) * 256 + 16384 * j + 3072 * i)
                a("buffer_load_dwordx4 v%d, %s, s%d offen offset:%d%s lds", vXd1 if i & 1 else vXd0, srd(sXs), sT1, i * 1024, wflags)
                vm.issue(("x", p))
    def wops(t):
        ops = []
        for i in range(8):
            g = []
            if t == 8 and i == 0:
                g += ["s_mov_b32 s%d, s%d" % (sWs, sWn), "s_mov_b32 s%d, s%d" % (sWs + 1, sWn + 1)]
            g.append("s_mov_b32 s%d, %d" % (sT1, ((t % 8) * 32 + i) * 8192))
            g.append("buffer_load_dwordx4 %s, v%d, %s, s%d offen%s" % (vr(WR(t % 3, i)), vWq, srd(sWs), sT1, wflags))
            ops.append(g)
        return ops
    def wload(t):
        for g in wops(t):
            for s_ in g: a(s_)
            vm.issue(("w", t))
    xdma(0)
    if OPT["warm"] is not None and OPT["gwait"]:
        poll(a, sT2, C_W, "2", sleep=0)
    for t in range(3): wload(t)
    a("s_mul_i32 s34, s%d, 49152", sB)
    a("s_add_u32 s34, s34, s36")
    a("s_add_u32 s35, s%d, s32", sH0)
    a("s_lshl_b32 s35, s35, 8")
    a("s_add_u32 s35, s35, s37")
    a("s_add_u32 s%d, s4, s34", sXn); a("s_addc_u32 s%d, s5, 0", sXn + 1)
    a("s_add_u32 s%d, s10, s35", sWn); a("s_addc_u32 s%d, s11, 0", sWn + 1)
    a("v_and_b32 v26, 7, v24")
    a("v_lshlrev_b32 v26, 1, v26")
    a("v_xor_b32 v26, v26, v25")
    a("v_lshlrev_b32 v27, 8, v24")
    a("v_add_u32 v27, s%d, v27", sQB)
    for s in range(4):
        a("v_xor_b32 v28, %d, v26", 4 * s)
        a("v_lshl_add_u32 v%d, v28, 4, v27", vXr + s)
    a("v_lshlrev_b32 v26, 9, v25")
    a("v_lshl_add_u32 v26, v24, 3, v26")
    a("v_add_u32 v0, s%d, v26", sPB)
    a("s_mov_b32 s%d, 0", sBT)
    for t in range(16):
        p, s = t >> 2, t & 3
        if s == 0:
            if ("x", p) in vm.q: vm.wait(("x", p))
            for ss in range(4):
                for j in range(3):
                    a("ds_read_b128 %s, v%d offset:%d", vr(XF(ss, j)), vXr + ss, j * 4096)
            a("s_waitcnt lgkmcnt(0)")
            if not (p & 1): xdma(p + 1)
        if ("w", t) in vm.q:
            vm.wait(("w", t))
        for e in range(8):
            wt = 252
            for jj in range(4):
                a("v_perm_b32 v%d, v%d, v%d, s%d", wt + jj, WR(t % 3, 2 * jj + 1) + (e >> 1), WR(t % 3, 2 * jj) + (e >> 1), sSH_ if e & 1 else sSL_)
            for j in range(3):
                a("%s %s, %s, %s, %s", MFMA, vr(AC(e, j)), vr(wt), vr(XF(s, j)), "0" if t % 8 == 0 else vr(AC(e, j)))
        if t % 8 < 7 and t + 3 < 16 and not (t < 8 <= t + 3): wload(t + 3)
        if t % 8 == 7:
            st = t // 8
            a("v_add_u32 v252, s%d, v%d", sQB, vL16)
            a("v_add_u32 v253, s%d, v%d", sPB, vL16)
            a("s_lshl_b32 s%d, s32, 2", sT1)
            a("v_mov_b32 v254, s%d", sT1)
            a.fence()
            a("s_cmp_eq_u32 s33, 1")
            a("s_cbranch_scc1 L_x1b_%d", st)
            for k in range(12):
                a("ds_write_b128 v252, %s offset:%d", vr(AC(4, 0) + 4 * k), k * 1024)
            a("s_branch L_x1c_%d", st)
            a.label("L_x1b_%d" % st)
            for k in range(12):
                a("ds_write_b128 v252, %s offset:%d", vr(AC(0, 0) + 4 * k), k * 1024)
            a("s_waitcnt lgkmcnt(0)")
            for k in range(48):
                a("v_mov_b32 v%d, v%d", AC(0, 0) + k, AC(4, 0) + k)
            a.label("L_x1c_%d" % st)
            a("s_waitcnt lgkmcnt(0)")
            a("s_mov_b64 exec, 1")
            a("ds_add_u32 v254, v%d offset:%d", vVal, C_BAR2)
            a("s_mov_b64 exec, -1")
            lab = "L_xb_%d" % st
            a.label(lab)
            a("ds_read_b32 v%d, v254 offset:%d", vPoll, C_BAR2)
            a("s_waitcnt lgkmcnt(0)")
            a("v_readfirstlane_b32 s%d, v%d", sT2, vPoll)
            a("s_cmp_ge_u32 s%d, %d", sT2, 2 * (st + 1))
            a("s_cbranch_scc0 %s", lab)
            for k in range(12):
                a("ds_read_b128 %s, v253 offset:%d", vr(AC(4, 0) + 4 * k), k * 1024)
            for k in range(12):
                a("s_waitcnt lgkmcnt(%d)", 11 - k)
                for r in range(4):
                    a("v_add_f32 v%d, v%d, v%d", AC(0, 0) + 4 * k + r, AC(0, 0) + 4 * k + r, AC(4, 0) + 4 * k + r)
            for j in range(3):
                for r in range(4):
                    d = AC(4, 0) + (j * 4 + r) * 2
                    for k in range(2):
                        a("v_cvt_pk_bf16_f32 v%d, v%d, v%d", d + k, AC(2 * k, j) + r, AC(2 * k + 1, j) + r)
                    a("ds_write_b64 v0, %s offset:%d", vr(d, 2), j * 2048 + r * 128)
            a("s_waitcnt lgkmcnt(0)")
            a("s_mov_b64 exec, 1")
            a("ds_add_u32 v254, v%d offset:%d", vVal, C_G + 8 * st)
            a("s_mov_b64 exec, -1")
            if st == 0:
                a("s_setprio %d", PRIO["g2"])
                for tt in (8, 9, 10): wload(tt)
                poll(a, sT2, C_A, "2", sleep=1)
                a("s_mov_b32 s%d, s%d", sXs, sXn); a("s_mov_b32 s%d, s%d", sXs + 1, sXn + 1)
                xdma(2)
    if prof: pstamp(a, 1)
    WO = lambda u, i: 108 + u * 32 + i * 4
    BF = lambda j: 236 + 4 * j
    sPs, sZ, sST = 44, 54, 55
    a("s_setprio %d", PRIO["g3"])
    a("v_lshrrev_b32 v8, 4, v%d", vL16)
    a("v_and_b32 v9, 15, v8")
    a("v_lshrrev_b32 v8, 4, v8")
    a("v_lshlrev_b32 v8, 12, v8")
    a("v_lshl_add_u32 v%d, v9, 4, v8", vWq)
    a("s_lshl_b32 s33, s%d, 17", sH0)
    a("s_lshl_b32 s%d, s%d, 8", sT1, sJ)
    a("s_add_u32 s33, s33, s%d", sT1)
    a("s_add_u32 s%d, s12, s33", sWs); a("s_addc_u32 s%d, s13, 0", sWs + 1); a("s_mov_b32 s%d, %d", sWs + 2, 255 * 1024 + 256)
    a("s_lshl_b32 s%d, s%d, 4", sT1, sB)
    a("s_lshr_b32 s%d, s%d, 1", sT2, sH0)
    a("s_add_u32 s%d, s%d, s%d", sT1, sT1, sT2)
    a("s_mul_i32 s%d, s%d, 49152", sT1, sT1)
    a("s_mul_i32 s%d, s%d, 12288", sT2, sJ)
    a("s_add_u32 s%d, s%d, s%d", sT1, sT1, sT2)
    a("s_add_u32 s%d, s20, s%d", sPs, sT1); a("s_addc_u32 s%d, s21, 0", sPs + 1)
    a("s_mov_b32 s%d, 12288", sPs + 2)
    a("s_mov_b32 s%d, 0", sST)
    a("s_mov_b32 s56, %d", SCR); a("s_mov_b32 s57, %d", SCR + NA * 8192); a("s_mov_b32 s58, 8")
    def owload(t):
        for h in range(2):
            a("s_mov_b32 s%d, %d", sT1, t * 32768 + h * 16384)
            for i in range(4):
                a("buffer_load_dwordx4 %s, v%d, %s, s%d offen offset:%d%s", vr(WO(t & 3, 4 * h + i)), vWq, srd(sWs), sT1, i * 1024, OPT["woflags"])
    if OPT.get("fuse"):
        a("s_branch G_out")
        a.label("S_red")
        a("s_cmp_eq_u32 s37, 3")
        a("s_cbranch_scc1 S_red_e")
        a("s_mov_b32 s60, s18"); a("s_mov_b32 s61, s19"); a("s_mov_b32 s62, 256"); a("s_mov_b32 s63, 0x20000")
        a("s_lshl_b32 s%d, s%d, 2", sT1, sB)
        a.label("S_r0")
        a("buffer_load_dword v%d, v%d, s[60:63], s%d offen sc0 sc1", vPoll, vZero, sT1)
        a("s_waitcnt vmcnt(0)")
        a("v_readfirstlane_b32 s%d, v%d", sT2, vPoll)
        a("s_cmp_ge_u32 s%d, 16", sT2)
        a("s_cbranch_scc0 S_r0")
        a("s_add_u32 s60, s20, 0x%x", FWS); a("s_addc_u32 s61, s21, 0"); a("s_mov_b32 s62, 4096")
        a("s_lshl_b32 s64, s59, 4")
        a("s_add_u32 s64, s64, s%d", sB)
        a("s_lshl_b32 s%d, s64, 7", sT1)
        a("v_lshrrev_b32 v9, 2, v%d", vL16)
        a("v_and_b32 v9, 60, v9")
        a("s_lshr_b32 s65, s%d, 1", sH0)
        a("s_mul_i32 s65, s65, 3")
        a("s_add_u32 s65, s65, s37")
        a("s_mul_i32 s66, s64, %d", 16 * 49152)
        a("s_lshl_b32 s%d, s65, 10", sT2)
        a("s_add_u32 s66, s66, s%d", sT2)
        a("s_add_u32 s68, s20, s66"); a("s_addc_u32 s69, s21, 0"); a("s_mov_b32 s70, %d", 15 * 49152 + 1024); a("s_mov_b32 s71, 0x20000")
        a("s_mul_hi_u32 s66, s65, 0x%x", (2 ** 32 + 11) // 12)
        a("s_mul_i32 s%d, s66, 12", sT2)
        a("s_sub_u32 s65, s65, s%d", sT2)
        a("s_mul_i32 s64, s%d, 48", sB)
        a("s_lshr_b32 s%d, s65, 2", sT2)
        a("s_lshl_b32 s%d, s%d, 4", sT2, sT2)
        a("s_add_u32 s64, s64, s%d", sT2)
        a("s_lshl_b32 s64, s64, 11")
        a("s_lshl_b32 s%d, s59, 10", sT2)
        a("s_add_u32 s64, s64, s%d", sT2)
        a("s_lshl_b32 s%d, s66, 8", sT2)
        a("s_add_u32 s64, s64, s%d", sT2)
        a("s_and_b32 s%d, s65, 3", sT2)
        a("s_lshl_b32 s%d, s%d, 4", sT2, sT2)
        a("s_add_u32 s64, s64, s%d", sT2)
        a("v_lshlrev_b32 v11, 9, v9")
        a("v_lshrrev_b32 v8, 8, v%d", vL16)
        a("v_lshl_add_u32 v11, v8, 6, v11")
        a.label("S_r1")
        a("buffer_load_dword v%d, v9, s[60:63], s%d offen sc0 sc1", vPoll, sT1)
        a("s_waitcnt vmcnt(0)")
        a("v_cmp_ne_u32 vcc, 1, v%d", vPoll)
        a("s_cbranch_vccz S_r2")
        a("s_sleep %d", OPT.get("rsleep", 8))
        a("s_branch S_r1")
        a.label("S_r2")
        for k in range(16):
            a("s_mov_b32 s%d, %d", sT2, k * 49152)
            a("buffer_load_dwordx4 %s, v%d, s[68:71], s%d offen sc0 sc1", vr(12 + 4 * k), vL16, sT2)
        a("s_mov_b32 s60, s16"); a("s_mov_b32 s61, s17"); a("s_mov_b32 s62, %d", 16 * 48 * 1024 * 2)
        for k in range(16):
            a("s_waitcnt vmcnt(%d)", 15 - k)
            for d in range(4):
                r = 12 + 4 * k + d
                if k == 0:
                    a("v_lshlrev_b32 v%d, 16, v%d", 80 + 2 * d, r)
                    a("v_and_b32 v%d, 0xffff0000, v%d", 81 + 2 * d, r)
                else:
                    a("v_lshlrev_b32 v88, 16, v%d", r)
                    a("v_and_b32 v89, 0xffff0000, v%d", r)
                    a("v_add_f32 v%d, v%d, v88", 80 + 2 * d, 80 + 2 * d)
                    a("v_add_f32 v%d, v%d, v89", 81 + 2 * d, 81 + 2 * d)
        for d in range(4):
            a("v_cvt_pk_bf16_f32 v%d, v%d, v%d", 92 + d, 80 + 2 * d, 81 + 2 * d)
        a("buffer_store_dwordx4 v[92:95], v11, s[60:63], s64 offen")
        a("s_waitcnt vmcnt(0)")
        a.label("S_red_e")
        a("s_setpc_b64 s[38:39]")
    a.label("G_out")
    for t in range(4): owload(t)

    a("v_mov_b32 v10, s58")
    for t in range(8):
        if t % 4 == 0:
            lab = "G_ow%d" % t
            a.label(lab)
            a("ds_read_b32 v%d, v10 offset:%d", vPoll, C_O + (t // 4) * 4)
            a("s_waitcnt lgkmcnt(0)")
            a("v_readfirstlane_b32 s%d, v%d", sT2, vPoll)
            a("s_cmp_ge_u32 s%d, 1", sT2)
            a("s_cbranch_scc1 %s_e", lab)
            a("s_sleep 4")
            a("s_branch %s", lab)
            a.label(lab + "_e")
            a("v_add_u32 v8, s%d, v%d", 56 + t // 4, vL16)
        for j in range(3):
            a("ds_read_b128 %s, v8 offset:%d", vr(BF(j)), ((t & 3) * 3 + j) * 1024)
        a("s_waitcnt vmcnt(%d)", 24 if t < 5 else 8 * (7 - t))
        for e in range(8):
            wt = 248 + (e & 1) * 4
            for jj in range(4):
                a("v_perm_b32 v%d, v%d, v%d, s%d", wt + jj, WO(t & 3, 2 * jj + 1) + (e >> 1), WO(t & 3, 2 * jj) + (e >> 1), sSH_ if e & 1 else sSL_)
            if e == 0:
                a("s_waitcnt lgkmcnt(0)")
            for j in range(3):
                a("%s %s, %s, %s, %s", MFMA, vr(AC(e, j)), vr(wt), vr(BF(j)), "0" if t == 0 else vr(AC(e, j)))
        if t < 4: owload(t + 4)
    for j in range(3):
        for r in range(4):
            d = 108 + (j * 4 + r) * 4
            for k in range(4):
                a("v_cvt_pk_bf16_f32 v%d, v%d, v%d", d + k, AC(2 * k, j) + r, AC(2 * k + 1, j) + r)
            if r == 0:
                a("s_mov_b32 s%d, %d", sT1, j * 4096)
            a("buffer_store_dwordx4 %s, v%d, %s, s%d offen offset:%d sc0 sc1", vr(d), vL16, srd(sPs), sT1, r * 1024)
    a("s_waitcnt vmcnt(0)")
    if OPT.get("fuse"):
        a("s_mov_b64 exec, 1")
        a("ds_add_rtn_u32 v%d, v%d, v%d offset:%d", vPoll, vZero, vVal, C_F)
        a("s_waitcnt lgkmcnt(0)")
        a("v_readfirstlane_b32 s%d, v%d", sT2, vPoll)
        a("s_and_b32 s%d, s%d, 3", sT2, sT2)
        a("s_cmp_lg_u32 s%d, 3", sT2)
        a("s_cbranch_scc1 G_nf")
        a("s_add_u32 s60, s20, 0x%x", FWS); a("s_addc_u32 s61, s21, 0"); a("s_mov_b32 s62, 4096"); a("s_mov_b32 s63, 0x20000")
        a("s_lshl_b32 s%d, s%d, 7", sT1, sB)
        a("s_lshl_b32 s%d, s%d, 1", sT2, sH0)
        a("s_add_u32 s%d, s%d, s%d", sT1, sT1, sT2)
        a("s_lshl_b32 s%d, s%d, 11", sT2, sST)
        a("s_add_u32 s%d, s%d, s%d", sT1, sT1, sT2)
        a("buffer_store_dword v%d, v%d, s[60:63], s%d offen sc0 sc1", vVal, vZero, sT1)
        a.label("G_nf")
        a("s_mov_b64 exec, -1")
    a("s_cmp_eq_u32 s%d, 1", sST)
    a("s_cbranch_scc1 G_end")
    if prof: pstamp(a, 3)
    if prof: a("s_waitcnt vmcnt(0)")
    a("s_mov_b32 s%d, 1", sST)
    a("s_add_u32 s%d, s80, s33", sWs); a("s_addc_u32 s%d, s81, 0", sWs + 1)
    a("s_add_u32 s%d, s%d, %d", sPs, sPs, 256 * 49152); a("s_addc_u32 s%d, s%d, 0", sPs + 1, sPs + 1)
    a("s_mov_b32 s56, %d", BR0); a("s_mov_b32 s57, %d", BR0 + BSZ); a("s_mov_b32 s58, 0")
    a("s_branch G_out")
    a.label("G_end")
    if OPT.get("fuse"):
        if prof: pstamp(a, 4)
        a("s_mov_b32 s59, 1")
        a("s_mov_b32 s37, s%d", sJ)
        a("s_call_b64 s[38:39], S_red")
    if prof: pstamp(a, 2)
    a("s_branch K_end")


def gen_k1(a, kn, T=8.0, prof=False, nomem=False, wflags=" nt", oflags=" sc0 sc1"):
    kernel_begin(a, kn)
    a("s_cmp_ge_u32 s2, 256")
    a("s_cbranch_scc1 K_end")
    a("s_load_dwordx8 s[4:11], s[0:1], 0")
    a("s_load_dwordx8 s[72:79], s[0:1], 40")
    a("s_load_dwordx2 s[12:13], s[0:1], 32")
    a("s_load_dwordx4 s[16:19], s[0:1], 80")
    a("s_load_dwordx2 s[80:81], s[0:1], 72")
    a("s_load_dwordx2 s[20:21], s[0:1], 96")
    a("v_lshrrev_b32 v1, 6, v0")
    a("v_and_b32 v0, 63, v0")
    a("v_readfirstlane_b32 s%d, v1", sWV)
    a("v_lshlrev_b32 v%d, 4, v0", vL16)
    a("v_mov_b32 v%d, 0", vZero)
    a("v_mov_b32 v%d, 1", vVal)
    a("v_lshlrev_b32 v%d, 2, v0", vPoll)
    a("ds_write_b32 v%d, v%d", vPoll, vZero)
    a("s_and_b32 s%d, s2, 7", sX)
    a("s_lshr_b32 s%d, s2, 3", sI)
    a("s_lshr_b32 s%d, s%d, 1", sB, sI)
    a("s_and_b32 s%d, s%d, 1", sS2, sI)
    a("s_lshl_b32 s%d, s%d, 2", sH0, sX)
    a("s_lshl_b32 s%d, s%d, 1", sT1, sS2)
    a("s_add_u32 s%d, s%d, s%d", sH0, sH0, sT1)
    a("s_and_b32 s%d, s%d, 3", sJ, sWV)
    a("s_lshr_b32 s%d, s%d, 2", sBB, sI)
    a("s_lshl_b32 s%d, s%d, 1", sBB, sBB)
    a("s_and_b32 s%d, s%d, 3", sHB, sI)
    a("s_lshl_b32 s%d, s%d, 2", sT1, sX)
    a("s_add_u32 s%d, s%d, s%d", sHB, sHB, sT1)
    a("s_waitcnt lgkmcnt(0)")
    if prof:
        a("s_lshl_b32 s100, s2, 3")
        a("s_add_u32 s100, s100, s%d", sWV)
        a("s_lshl_b32 s100, s100, 6")
        a("s_add_u32 s100, s100, 0x2000000")
        a("s_add_u32 s92, s20, s100"); a("s_addc_u32 s93, s21, 0"); a("s_mov_b32 s94, 64"); a("s_mov_b32 s95, 0x20000")
        pstamp(a, 0)
    a("s_barrier")
    a("s_cmp_lt_u32 s%d, 4", sWV)
    a("s_cbranch_scc1 R_att")
    gen_gemm(a, prof, wflags)
    gen_att(a, T, prof, nomem, oflags)
    a.label("K_end")
    a("s_waitcnt vmcnt(0)")
    a("s_endpgm")


def main(fname, which=(0, 1), prio=None, opt=None, g=None, rflags="", **kw):
    import gen_v9
    if prio: PRIO.update(prio)
    if opt: OPT.update(opt)
    if g: GEO.update(g)
    geo()
    a = HAsm()
    if OPT.get("fuse"):
        kn = NAME + "_kernel"
        gen_k1(a, kn, **kw)
        txt = full_file([(kn, (256, 1, 1), (512, 1, 1), LDS_TOTAL)], a.text(), [kernel_desc(kn, 256)])
    else:
        gen_k1(a, "attn_kernel", **kw)
        gen_v9.gen_k2(a, "reduce_kernel", rflags)
        Ls = [("attn_kernel", (256, 1, 1), (512, 1, 1), LDS_TOTAL), ("reduce_kernel", (384, 1, 1), (256, 1, 1), 0)]
        txt = full_file([Ls[i] for i in which], a.text(), [kernel_desc("attn_kernel", 256), kernel_desc("reduce_kernel", 80)])
    open(fname, "w").write(txt)

if __name__ == "__main__":
    OPT.update(warm=None, th=4, fuse=True)
    main("c_none.s")
    for th, al, be in ((4, 10, 5), (4, 10, 6), (4, 9, 7), (4, 8, 8), (4, 8, 9), (4, 7, 10), (0, 8, 8)):
        main("l_%d_%d_%d.s" % (th, al, be), opt=dict(th=th, loc=(al, be)))
    main("l_4_9_7_p.s", prof=True, opt=dict(th=4, loc=(9, 7)))
    main("l_4_8_9_p.s", prof=True, opt=dict(th=4, loc=(8, 9)))
```

```python
import sys, math, struct
from asmgen import *
from hz import HAsm
from gen_v1 import f2u, vr, MFMA
import gen_v1

PRIO = dict(b=0, a=1, g=3, g2=2, g3=2)
OPT = dict(warm=' nt', gwait=True, woflags=' nt')
SCR = 1024
GEO = dict(KB=3, VB=2, NA=4)
def geo():
    global KB, VB, NA, BR0, BSZ, LDS_TOTAL
    KB, VB, NA = GEO["KB"], GEO["VB"], GEO["NA"]
    BR0 = SCR + 2 * NA * 8192
    BSZ = (KB + VB) * 8192
    LDS_TOTAL = BR0 + 2 * BSZ
    assert LDS_TOTAL <= 163840
geo()
C_G, C_A, C_BAR, C_P, C_W, C_BAR2, C_W0, C_O, C_TH, C_F, C_PR = 32, 4, 8, 12, 16, 48, 20, 64, 24, 28, 80
FWS = 0x1800000
srd = lambda b: "s[%d:%d]" % (b, b + 3)

vL16, vZero, vPoll, vVal = 1, 2, 3, 4
sWV, sX, sI, sJ, sB, sS2, sH0 = 22, 23, 24, 25, 26, 27, 29
sT1, sT2 = 30, 31
sBB, sHB = 28, 67

def poll(a, sreg, off, cond, sleep=1):
    l0, l1 = a.newlabel("L_p"), a.newlabel("L_q")
    a.label(l0)
    a("ds_read_b32 v%d, v%d offset:%d", vPoll, vZero, off)
    a("s_waitcnt lgkmcnt(0)")
    a("v_readfirstlane_b32 s%d, v%d", sreg, vPoll)
    a("s_cmp_ge_u32 s%d, %s", sreg, cond)
    a("s_cbranch_scc1 %s", l1)
    if sleep: a("s_sleep %d", sleep)
    a("s_branch %s", l0)
    a.label(l1)

def arrive(a, off, wait=True):
    if wait: a("s_waitcnt lgkmcnt(0)")
    a("s_mov_b64 exec, 1")
    a("ds_add_u32 v%d, v%d offset:%d", vZero, vVal, off)
    a("s_mov_b64 exec, -1")

def pstamp(a, idx):
    a("s_memrealtime s[98:99]")
    a("s_waitcnt lgkmcnt(0)")
    a("v_mov_b32 v%d, s98", vPoll)
    a("buffer_store_dword v%d, v%d, s[92:95], 0 offen offset:%d", vPoll, vZero, 4 * idx)

vD = 5
vKr, vVr, vM = 8, 12, 20
O = lambda e, j: 24 + (e * 3 + j) * 4
L = lambda j: 120 + j * 4
S = lambda t, j: 132 + (t * 3 + j) * 4
Q = lambda j, s: 156 + (j * 4 + s) * 4
ONES = 204
F = lambda k: 208 + k * 4
P = lambda j: 240 + j * 4
MX0, MX1 = 252, 253
RT = 240
sSK, sSV, sO = 36, 40, 44
sC, sT, sCNT = 48, 49, 50
sKO, sVO, sKL, sVL, sKB, sVB = 51, 52, 53, 54, 55, 56
sKS, sVS, sDK, sDV, sBP, sKN, sVN, sTH = 57, 58, 59, 60, 61, 64, 65, 66

def emit(a, groups):
    for g in groups:
        for s in g: a(s)
def adv3(reg):
    lim = sKN if reg in (sKL, sKS) else sVN
    return ["s_add_u32 s%d, s%d, 8192" % (reg, reg), "s_cmp_eq_u32 s%d, s%d" % (reg, lim), "s_cselect_b32 s%d, 0, s%d" % (reg, reg)]
CUR = ["B"]
def unit(isV):
    which, soff, sl, sb = (sSV, sVO, sVL, sVB) if isV else (sSK, sKO, sKL, sKB)
    pol = OPT.get("pol", {}).get("A" if CUR[0] == "A" else ("V" if isV else "K"), " nt")
    ops = []
    for half in range(2):
        for i in range(4):
            g = []
            if i == 0:
                if half == 0:
                    g.append("s_add_u32 m0, s%d, s%d" % (sl, sb))
                    g.append("s_nop 0")
                else:
                    g.append("s_add_u32 m0, m0, 4096")
                    g.append("s_add_u32 s%d, s%d, 4096" % (soff, soff))
            g.append("buffer_load_dwordx4 v%d, %s, s%d offen offset:%d%s lds" % (vD + (i & 1), srd(which), soff, i * 1024, pol))
            ops.append(g)
    ops.append(["s_add_u32 s%d, s%d, 4096" % (soff, soff)] + adv3(sl))
    return ops
def kread(k): return "ds_read_b128 %s, v%d offset:%d" % (vr(F(k)), vKr + (k & 3), (k >> 2) * 4096)
def vread(e): return ["ds_read_b64_tr_b16 %s, v%d offset:%d" % (vr(F(e) + 2 * hh, 2), vVr + e, hh * 4096) for hh in range(2)]
def smf(k): return ["%s %s, %s, %s, %s" % (MFMA, vr(S(k >> 2, j)), vr(F(k)), vr(Q(j, k & 3)), "0" if (k & 3) == 0 else vr(S(k >> 2, j))) for j in range(3)]
def pvf(e):
    if e < 8:
        return ["%s %s, %s, %s, %s" % (MFMA, vr(O(e, j)), vr(F(e)), vr(P(j)), vr(O(e, j))) for j in range(3)]
    return ["%s %s, %s, %s, %s" % (MFMA, vr(L(j)), vr(ONES), vr(P(j)), vr(L(j))) for j in range(3)]
def fma(t): return ["v_fma_f32 v%d, v%d, s%d, -v%d" % (S(t, j) + r, S(t, j) + r, sC, vM + j) for j in range(3) for r in range(4)]
def mx(t):
    r = [S(t, j) + i for j in range(3) for i in range(4)]
    d = MX0 if t == 0 else MX1
    out = ["v_max3_f32 v%d, v%d, v%d, v%d" % (d, r[0], r[1], r[2])]
    for k in range(3, 11, 2):
        out.append("v_max3_f32 v%d, v%d, v%d, v%d" % (d, d, r[k], r[k + 1]))
    out.append(("v_max_f32 v%d, v%d, v%d" % (d, d, r[11])) if t == 0 else ("v_max3_f32 v%d, v%d, v%d, v%d" % (d, d, r[11], MX0)))
    return out
def fmamx(t):
    f, m = fma(t), mx(t)
    return f[0:5] + [m[0]] + f[5:7] + [m[1]] + f[7:9] + [m[2]] + f[9:11] + [m[3]] + f[11:12] + [m[4], m[5]]
def exps(t): return ["v_exp_f32 v%d, v%d" % (S(t, j) + r, S(t, j) + r) for j in range(3) for r in range(4)]
def cvts(t): return ["v_cvt_pk_bf16_f32 v%d, v%d, v%d" % (P(j) + 2 * t + k, S(t, j) + 2 * k, S(t, j) + 2 * k + 1) for j in range(3) for k in range(2)]
def weave(a, mf, fill):
    n = len(mf); k = 0
    for i, m in enumerate(mf):
        a(m)
        tgt = (len(fill) * (i + 1)) // n
        while k < tgt:
            a(fill[k]); k += 1
def rowmax(a):
    for j in range(3):
        d = RT + j
        a("v_max3_f32 v%d, v%d, v%d, v%d", d, S(0, j), S(0, j) + 1, S(0, j) + 2)
        a("v_max3_f32 v%d, v%d, v%d, v%d", d, d, S(0, j) + 3, S(1, j))
        a("v_max3_f32 v%d, v%d, v%d, v%d", d, d, S(1, j) + 1, S(1, j) + 2)
        a("v_max_f32 v%d, v%d, v%d", d, d, S(1, j) + 3)
    for sw in ("v_permlane32_swap_b32", "v_permlane16_swap_b32"):
        for j in range(3): a("v_mov_b32 v%d, v%d", RT + 3 + j, RT + j)
        for j in range(3): a("%s v%d, v%d", sw, RT + j, RT + 3 + j)
        a("s_nop 1")
        for j in range(3): a("v_max_f32 v%d, v%d, v%d", RT + j, RT + j, RT + 3 + j)
def shift_x(a):
    for j in range(3):
        a("v_add_f32 v%d, v%d, v%d", vM + j, vM + j, RT + j)
        for t in range(2):
            for r in range(4):
                a("v_sub_f32 v%d, v%d, v%d", S(t, j) + r, S(t, j) + r, RT + j)
def rescale(a):
    rowmax(a)
    for j in range(3):
        a("v_max_f32 v%d, 0, v%d", RT + j, RT + j)
        a("v_exp_f32 v%d, -v%d", RT + 3 + j, RT + j)
    shift_x(a)
    for j in range(3):
        for e in range(8):
            for r in range(4):
                a("v_mul_f32 v%d, v%d, v%d", O(e, j) + r, O(e, j) + r, RT + 3 + j)
        for r in range(4):
            a("v_mul_f32 v%d, v%d, v%d", L(j) + r, L(j) + r, RT + 3 + j)
def step(sreg, sd, regs_):
    return (["s_mov_b32 s%d, s%d" % (sd, sreg)] + adv3(sreg) + ["s_sub_u32 s%d, s%d, s%d" % (sd, sreg, sd)],
            ["v_add_u32 v%d, s%d, v%d" % (r, sd, r) for r in regs_])

SEG = [False]
def seg(a, i):
    if not SEG[0]: return
    a("s_memtime s[98:99]")
    a("s_waitcnt lgkmcnt(0)")
    a("s_sub_u32 s100, s98, s96")
    a("s_add_u32 s%d, s%d, s100", 82 + i, 82 + i)
    a("s_mov_b32 s96, s98")

def throttle(a):
    if OPT.get("th") is None: return
    lab = a.newlabel("L_th")
    a("s_cmp_eq_u32 s%d, 0", sTH)
    a("s_cbranch_scc1 %s", lab)
    if OPT.get("ctl") and OPT["ctl"]["th"] != OPT["th"]:
        hi, lo = max(OPT["th"], OPT["ctl"]["th"]), min(OPT["th"], OPT["ctl"]["th"])
        a("s_waitcnt vmcnt(%d)", hi)
        a("s_cmp_eq_u32 s%d, %d", sTH, 1 if hi == OPT["th"] else 2)
        a("s_cbranch_scc1 %s", lab)
        a("s_waitcnt vmcnt(%d)", lo)
    else:
        a("s_waitcnt vmcnt(%d)", OPT["th"])
    a.label(lab)

def body(a, kind, first, last, tag):
    B = kind == "B"
    CUR[0] = kind
    if B and not first:
        seg(a, 0)
        a("s_waitcnt vmcnt(%d)", 16 * (VB - 1))
        seg(a, 1)
    ksc, kx = step(sKS, sDK, range(vKr, vKr + 4))
    for s in ksc: a(s)
    xi = unit(0) if B else []
    e1 = [] if first else exps(1)
    c1 = [] if first else cvts(1)
    f0 = fmamx(0)
    fills = [e1[0:4], e1[4:8], e1[8:12], c1, kx, f0[0:6], f0[6:12], f0[12:18]]
    for k in range(8):
        a("s_waitcnt lgkmcnt(%d)", (7 - k) if first else (7 + k) if k < 3 else 6 if k == 3 else 13)
        weave(a, smf(k), fills[k])
        if not first:
            for s in vread(k): a(s)
        if first and k == 3:
            a("s_waitcnt lgkmcnt(0)")
        if k == 3 and xi: throttle(a)
        if k >= 3 and xi:
            n = 2 if k < 7 else len(xi)
            emit(a, xi[:n]); xi = xi[n:]
    f1 = fmamx(1)
    vsc, vx = step(sVS, sDV, range(vVr, vVr + 8))
    def sync_arrive():
        if not B:
            seg(a, 0)
            a("s_waitcnt vmcnt(%d) lgkmcnt(0)", 8 * (NA - 2))
            seg(a, 1)
            arrive(a, C_P, wait=False)
            a("s_add_u32 s%d, s%d, 2", sBP, sBP)
    def sync_wait():
        seg(a, 2)
        sync_wait2()
        seg(a, 3)
    def sync_wait2():
        if B:
            n = 2 * KB - 1
            if first and 1 - KB + VB - 1 < 0: n -= 1
            a("s_waitcnt vmcnt(%d)", 8 * n)
        else:
            poll(a, sT2, C_P, "s%d" % sBP, sleep=0)
    if first:
        sync_arrive()
        if B: emit(a, unit(1))
        a("s_nop 4")
        for s in fma(1): a(s)
        sync_wait()
        for k in range(8): a(kread(k))
        if not B:
            a("s_and_b32 s%d, s%d, 1", sT1, sWV)
            a("s_cbranch_scc1 L_af_%s", tag)
            emit(a, unit(0))
            a.label("L_af_" + tag)
        rowmax(a)
        shift_x(a)
        for s in exps(0): a(s)
        for s in cvts(0): a(s)
        return
    a("s_waitcnt lgkmcnt(14)")
    for s in vsc: a(s)
    weave(a, pvf(0), vx[0:4])
    a("s_waitcnt lgkmcnt(12)")
    weave(a, pvf(1), f1[0:8])
    if B and OPT.get("th") is not None:
        if OPT.get("ctl") or OPT.get("loc"):
            a("v_mov_b32 v23, s%d", sCNT)
            a("ds_write_b32 v7, v23 offset:%d", C_PR)
        a("ds_read_b32 v%d, v%d offset:%d", vPoll, vZero, C_TH)
    if not B and OPT.get("loc") and not last:
        a("ds_read_b32 v%d, v%d offset:%d", vPoll, vZero, C_PR)
    a("s_waitcnt lgkmcnt(0)")
    if B and OPT.get("th") is not None:
        a("v_readfirstlane_b32 s%d, v%d", sTH, vPoll)
    if not B and OPT.get("loc") and not last:
        al, be = OPT["loc"]
        a("v_readfirstlane_b32 s%d, v%d", sT1, vPoll)
        a("s_mul_i32 s%d, s%d, %d", sT2, sCNT, al)
        a("s_lshl_b32 s%d, s%d, 4", sT1, sT1)
        a("s_add_i32 s%d, s%d, %d", sT1, sT1, 32 * al + 16 * be - 512)
        a("s_cmp_gt_i32 s%d, s%d", sT1, sT2)
        a("s_cselect_b32 s%d, 1, 0", sT1)
        a("v_mov_b32 v23, s%d", sT1)
        a("ds_write_b32 v%d, v23 offset:%d", vZero, C_TH)
    sync_arrive()
    weave(a, pvf(2), f1[8:18])
    a("v_cmp_nge_f32 vcc, s%d, v%d", sT, MX1)
    def rest(fill):
        CUR[0] = kind
        yi = unit(1) if B else []
        if B: throttle(a)
        emit(a, yi[:4])
        weave(a, pvf(3), fill[0:2] + vx[4:8])
        emit(a, yi[4:])
        sync_wait()
        if not last:
            for k in range(4): a(kread(k))
        zi = [] if B else unit(0)
        for e in range(4, 9):
            weave(a, pvf(e), fill[2 * (e - 3):2 * (e - 2)])
            if e < 8 and not last:
                a(kread(e))
            n = 2 if e < 8 else len(zi)
            emit(a, zi[:n]); zi = zi[n:]
    a("s_cbranch_vccnz L_rare_%s", tag)
    rest(exps(0))
    a.label("L_join_" + tag)
    a("s_nop 0")
    for s in cvts(0): a(s)
    def rare():
        a.label("L_rare_" + tag)
        rest([])
        a("s_nop 7")
        rescale(a)
        for s in exps(0): a(s)
        a("s_branch L_join_%s", tag)
    return rare

def epilogue(a, kind):
    if kind == "B":
        a("s_waitcnt vmcnt(%d)", 16 * (VB - 1))
    for e in range(7):
        for s in vread(e): a(s)
    for s in exps(1): a(s)
    a("s_waitcnt lgkmcnt(6)")
    for s in vread(7): a(s)
    for s in cvts(1): a(s)
    a("s_waitcnt lgkmcnt(0)")
    for e in range(9):
        for s in pvf(e): a(s)

def gen_att(a, T, prof, nomem, oflags):
    a.label("R_att")
    a("v_and_b32 v252, 15, v0")
    a("v_lshrrev_b32 v253, 4, v0")
    a("v_lshlrev_b32 v255, 8, v253")
    a("v_lshlrev_b32 v254, 1, v253")
    a("v_xor_b32 v254, v254, v252")
    for i in range(2):
        a("v_xor_b32 v24, %d, v254", 8 * i)
        a("v_lshl_add_u32 v%d, v24, 4, v255", vD + i)
    NR = 0 if nomem else 0x40000
    a("s_mov_b32 s%d, %d", sSK + 2, NR); a("s_mov_b32 s%d, 0x20000", sSK + 3)
    a("s_mov_b32 s%d, %d", sSV + 2, NR); a("s_mov_b32 s%d, 0x20000", sSV + 3)
    for r in (sKO, sVO, sKL, sVL, sKS, sVS, sBP, sTH):
        a("s_mov_b32 s%d, 0", r)
    a("s_and_b32 s%d, s%d, 1", sT1, sWV)
    a("s_lshl_b32 s32, s%d, 5", sB)
    a("s_add_u32 s32, s32, s%d", sH0)
    a("s_add_u32 s32, s32, s%d", sT1)
    a("s_cmp_ge_u32 s%d, 2", sWV)
    a("s_cbranch_scc1 L_setA")
    a("s_setprio %d", PRIO["b"])
    a("s_lshl_b32 s33, s32, 18")
    a("s_add_u32 s%d, s74, s33", sSK); a("s_addc_u32 s%d, s75, 0", sSK + 1)
    a("s_add_u32 s%d, s76, s33", sSV); a("s_addc_u32 s%d, s77, 0", sSV + 1)
    a("s_mul_i32 s%d, s%d, %d", sKB, sWV, BSZ)
    a("s_add_u32 s%d, s%d, %d", sKB, sKB, BR0)
    a("s_add_u32 s%d, s%d, %d", sVB, sKB, KB * 8192)
    a("s_mov_b32 s%d, %d", sKN, KB * 8192); a("s_mov_b32 s%d, %d", sVN, VB * 8192)
    init = []
    CUR[0] = "B"
    for i in range(-max(KB, VB), 0):
        if i + KB >= 0: init.append(0)
        if i + VB - 1 >= 0: init.append(1)
    early = OPT.get("early", 0)
    for c in init[:early]:
        emit(a, unit(c))
    if OPT.get("pflate") in (2, 3):
        poll(a, sT2, C_W0, "%d" % (6 if OPT["warm"] is not None else 4), sleep=1)
    elif OPT["warm"] is not None:
        poll(a, sT2, C_W if OPT.get("pflate") else C_W0, "2", sleep=0)
    for c in init[early:]:
        emit(a, unit(c))
    a("s_mov_b32 s34, s%d", sKB); a("s_mov_b32 s35, s%d", sVB)
    a("s_branch L_set")
    a.label("L_setA")
    def finit():
        if OPT.get("fuse"):
            a("s_cmp_lg_u32 s%d, 2", sWV)
            a("s_cbranch_scc1 L_noinit")
            a("s_add_u32 s60, s20, 0x%x", FWS); a("s_addc_u32 s61, s21, 0"); a("s_mov_b32 s62, 4096"); a("s_mov_b32 s63, 0x20000")
            a("s_lshl_b32 s%d, s%d, 7", sT1, sB)
            a("s_lshl_b32 s%d, s%d, 1", sT2, sH0)
            a("s_add_u32 s%d, s%d, s%d", sT1, sT1, sT2)
            a("s_mov_b64 exec, 1")
            a("buffer_store_dword v%d, v%d, s[60:63], s%d offen sc0 sc1", vZero, vZero, sT1)
            a("buffer_store_dword v%d, v%d, s[60:63], s%d offen offset:2048 sc0 sc1", vZero, vZero, sT1)
            a("s_waitcnt vmcnt(0)")
            a("s_mov_b32 s60, s18"); a("s_mov_b32 s61, s19"); a("s_mov_b32 s62, 256")
            a("s_lshl_b32 s%d, s%d, 2", sT1, sB)
            a("buffer_atomic_add v%d, v%d, s[60:63], s%d offen sc1", vVal, vZero, sT1)
            a("s_mov_b64 exec, -1")
            a("s_waitcnt vmcnt(0)")
            a("s_mov_b32 s%d, 0", sBP)
            a.label("L_noinit")

    if OPT["warm"] is None: finit()
    if OPT["warm"] is not None:
        wf = OPT["warm"]
        a("s_setprio 3")
        a("s_mov_b32 s63, 0x20000")
        a("s_and_b32 s33, s%d, 1", sWV)
        for br, wp in enumerate((78, 10)):
            if br == 1:
                finit()
                a("s_mov_b32 s63, 0x20000")
                if not OPT.get("warmA"): break
                if OPT["warmA"] == 2: poll(a, sT2, C_W0, "6", sleep=2)
                else: poll(a, sT2, C_A, "1", sleep=4)
            a("s_mov_b32 s60, s%d", wp); a("s_mov_b32 s61, s%d", wp + 1); a("s_mov_b32 s62, 0x400000")
            a("s_lshl_b32 s%d, s%d, 17", sT1, sI)
            a("s_lshl_b32 s%d, s33, 16", sT2)
            a("s_add_u32 s%d, s%d, s%d", sT1, sT1, sT2)
            a("s_lshl_b32 s%d, s%d, 10", sT2, sX)
            a("s_add_u32 s%d, s%d, s%d", sT1, sT1, sT2)
            for k in range(8):
                a("buffer_load_dwordx4 %s, v%d, s[60:63], s%d offen%s", vr(24 + 4 * k), vL16, sT1, wf)
                a("s_add_u32 s%d, s%d, 8192", sT1, sT1)
            if br == 0:
                arrive(a, C_W0)
            if br == 1 and OPT.get("warmX"):
                a("s_mov_b32 s60, s4"); a("s_mov_b32 s61, s5"); a("s_mov_b32 s62, 786432")
                a("s_mul_i32 s%d, s%d, 24576", sT1, sI)
                a("s_mul_i32 s%d, s33, 12288", sT2)
                a("s_add_u32 s%d, s%d, s%d", sT1, sT1, sT2)
                for k in range(12):
                    a("buffer_load_dwordx4 %s, v%d, s[60:63], s%d offen offset:%d%s", vr(56 + 4 * k), vL16, sT1, (k % 4) * 1024, wf)
                    if k % 4 == 3: a("s_add_u32 s%d, s%d, 4096", sT1, sT1)
            a("s_waitcnt vmcnt(0)")
            if br == 0:
                arrive(a, C_W)
                if prof: pstamp(a, 3)
        a("s_mov_b32 s%d, 0", sBP)
    if OPT.get("l2pf"):
        nt_, depth = OPT["l2pf"]
        a("s_setprio 0")
        a("s_lshl_b32 s33, s32, 18")
        a("s_mov_b32 s62, 0x40000"); a("s_mov_b32 s63, 0x20000")
        a("s_mov_b32 s70, 0x40000"); a("s_mov_b32 s71, 0x20000")
        a("s_add_u32 s60, s74, s33"); a("s_addc_u32 s61, s75, 0")
        a("s_add_u32 s68, s76, s33"); a("s_addc_u32 s69, s77, 0")
        for d in range(OPT.get("l2delay", 0)): a("s_sleep 32")
        n = 0
        for t in range(nt_):
            for isV in (1, 0):
                tile = t + (VB - 1 if isV else KB)
                for k in range(8):
                    if k % 4 == 0:
                        a("s_mov_b32 s%d, %d", sT1, tile * 8192 + k * 1024)
                    a("buffer_load_dwordx4 %s, v%d, %s, s%d offen offset:%d nt", vr(24 + 4 * (n % 32)), vL16, "s[68:71]" if isV else "s[60:63]", sT1, (k % 4) * 1024)
                    a.lines[-1] = a.lines[-1].replace(" nt", OPT.get("pfpol", " nt"))
                    n += 1
                    if n % 4 == 0 and n >= depth:
                        a("s_waitcnt vmcnt(%d)", depth - 4)
        a("s_waitcnt vmcnt(0)")
        a("s_mov_b32 s%d, 0", sBP)
    a("s_setprio %d", PRIO["a"])
    a("s_lshl_b32 s33, s%d, 3", sB)
    a("s_add_u32 s33, s33, s%d", sX)
    a("s_lshl_b32 s33, s33, 18")
    a("s_cmp_eq_u32 s%d, 3", sWV)
    a("s_cselect_b32 s%d, s8, s6", sSK); a("s_cselect_b32 s%d, s9, s7", sSK + 1)
    a("s_mov_b32 s34, %d", SCR); a("s_mov_b32 s35, %d", SCR + NA * 8192)
    a("s_mov_b32 s%d, %d", sKN, NA * 8192); a("s_mov_b32 s%d, %d", sVN, NA * 8192)
    a("s_cselect_b32 s%d, s35, s34", sKB)
    a("s_add_u32 s%d, s%d, s33", sSK, sSK); a("s_addc_u32 s%d, s%d, 0", sSK + 1, sSK + 1)
    a("s_mov_b32 s%d, s%d", sSV, sSK); a("s_mov_b32 s%d, s%d", sSV + 1, sSK + 1); a("s_mov_b32 s%d, s%d", sVB, sKB)
    a.label("L_set")
    a("s_mov_b32 s%d, 0x%x", sC, f2u(128 ** -0.5 * math.log2(math.e)))
    a("s_mov_b32 s%d, 0x%x", sT, f2u(T))
    a("v_and_b32 v254, 7, v252")
    a("v_lshlrev_b32 v254, 1, v254")
    a("v_xor_b32 v254, v254, v253")
    a("v_lshlrev_b32 v255, 8, v252")
    a("v_add_u32 v255, s34, v255")
    for s in range(4):
        a("v_xor_b32 v24, %d, v254", 4 * s)
        a("v_lshl_add_u32 v%d, v24, 4, v255", vKr + s)
    a("v_lshrrev_b32 v254, 2, v252")
    a("v_lshl_add_u32 v254, v253, 2, v254")
    a("v_and_b32 v255, 3, v252")
    a("v_lshlrev_b32 v255, 3, v255")
    a("v_lshl_add_u32 v255, v254, 8, v255")
    a("v_add_u32 v255, s35, v255")
    a("v_and_b32 v254, 7, v254")
    for e in range(8):
        a("v_xor_b32 v24, %d, v254", e)
        a("v_lshl_add_u32 v%d, v24, 5, v255", vVr + e)
    for k in range(4):
        a("v_mov_b32 v%d, 0x3f803f80", ONES + k)
    for r in range(24, 132):
        a("v_mov_b32 v%d, 0", r)
    for j in range(3):
        a("v_mov_b32 v%d, 0", vM + j)
    a("s_mov_b32 s%d, 1", sCNT)
    a("s_lshl_b32 s%d, s%d, 2", sT1, sWV)
    a("v_mov_b32 v7, s%d", sT1)
    a.label("L_wq")
    a("ds_read_b32 v%d, v7 offset:%d", vPoll, C_G)
    a("s_waitcnt lgkmcnt(0)")
    a("v_readfirstlane_b32 s%d, v%d", sT2, vPoll)
    a("s_cmp_ge_u32 s%d, 2", sT2)
    a("s_cbranch_scc1 L_wq2")
    a("s_sleep 2")
    a("s_branch L_wq")
    a.label("L_wq2")
    a("s_and_b32 s%d, s%d, 1", sT1, sWV)
    a("s_mul_i32 s%d, s%d, 12288", sT1, sT1)
    a("v_lshrrev_b32 v7, 1, v%d", vL16)
    a("v_add_u32 v7, s%d, v7", sT1)
    for f in range(12):
        a("ds_read_b64 %s, v7 offset:%d", vr(Q(0, 0) + 4 * f, 2), SCR + 24576 + f * 512)
        a("ds_read_b64 %s, v7 offset:%d", vr(Q(0, 0) + 4 * f + 2, 2), SCR + f * 512)
        if f == 6: a("s_waitcnt lgkmcnt(4)")
    arrive(a, C_A)
    if prof: pstamp(a, 1)
    rares = []
    if SEG[0]:
        a("s_mov_b32 s96, 0")
        for i in range(6): a("s_mov_b32 s%d, 0", 82 + i)
    a("s_cmp_ge_u32 s%d, 2", sWV)
    a("s_cbranch_scc1 L_runA")
    a("s_lshl_b32 s%d, s%d, 2", sT1, sWV)
    a("v_mov_b32 v7, s%d", sT1)
    a("s_waitcnt vmcnt(%d)", 8 * (len(init) - 1 - init.index(0)))
    for k in range(8): a(kread(k))
    if prof: a("s_waitcnt vmcnt(0)")
    seg(a, 5)
    body(a, "B", True, False, "B0")
    a.label("L_loopB")
    rares.append(body(a, "B", False, False, "B1"))
    a("s_add_u32 s%d, s%d, 1", sCNT, sCNT)
    a("s_cmp_lt_u32 s%d, 31", sCNT)
    a("s_cbranch_scc1 L_loopB")
    rares.append(body(a, "B", False, True, "B2"))
    epilogue(a, "B")
    a("s_branch L_out")
    a.label("L_runA")
    poll(a, sT2, C_A, "4", sleep=2)
    a("ds_write_b32 v%d, v%d offset:%d", vZero, vVal, C_TH)
    CUR[0] = "A"
    for k in range(NA): emit(a, unit(0))
    a("s_waitcnt vmcnt(%d)", 8 * (NA - 1))
    arrive(a, C_P)
    a("s_add_u32 s%d, s%d, 2", sBP, sBP)
    poll(a, sT2, C_P, "s%d" % sBP, sleep=0)
    for k in range(8): a(kread(k))
    seg(a, 5)
    body(a, "A", True, False, "A0")
    a.label("L_loopA")
    rares.append(body(a, "A", False, False, "A1"))
    a("s_add_u32 s%d, s%d, 1", sCNT, sCNT)
    a("s_cmp_lt_u32 s%d, 31", sCNT)
    a("s_cbranch_scc1 L_loopA")
    a("ds_write_b32 v%d, v%d offset:%d", vZero, vZero, C_TH)
    a("s_waitcnt lgkmcnt(0)")
    rares.append(body(a, "A", False, True, "A2"))
    epilogue(a, "A")
    arrive(a, C_P)
    a("s_add_u32 s%d, s%d, 2", sBP, sBP)
    poll(a, sT2, C_P, "s%d" % sBP, sleep=0)
    a.label("L_out")
    a("s_nop 7")
    for j in range(3):
        a("v_rcp_f32 v%d, v%d", RT + j, L(j))
    a("v_add_u32 v7, s%d, v%d", sKB, vL16)
    a("s_waitcnt vmcnt(0)")
    for u in range(4):
        for j in range(3):
            for t in range(2):
                for r in range(4):
                    a("v_mul_f32 v%d, v%d, v%d", O(2 * u + t, j) + r, O(2 * u + t, j) + r, RT + j)
            d = Q(j, u)
            for t in range(2):
                for k in range(2):
                    a("v_cvt_pk_bf16_f32 v%d, v%d, v%d", d + 2 * t + k, O(2 * u + t, j) + 2 * k, O(2 * u + t, j) + 2 * k + 1)
            a("ds_write_b128 v7, %s offset:%d", vr(d), j * 4096 + u * 1024)
    a("s_lshl_b32 s%d, s%d, 2", sT1, sWV)
    a("v_mov_b32 v7, s%d", sT1)
    a("s_waitcnt lgkmcnt(0)")
    a("ds_write_b32 v7, v%d offset:%d", vVal, C_O)
    a("s_waitcnt lgkmcnt(0)")
    if prof:
        pstamp(a, 2)
    if OPT.get("fuse"):
        a("s_cmp_lt_u32 s%d, 2", sWV)
        a("s_cbranch_scc1 K_end")
        a("s_mov_b32 s59, 0")
        a("s_sub_u32 s37, s%d, 2", sWV)
        a("s_call_b64 s[38:39], S_red")
        a("s_add_u32 s37, s37, 2")
        a("s_call_b64 s[38:39], S_red")
    if OPT.get("ctl"):
        c = OPT["ctl"]
        a("s_cmp_lg_u32 s%d, 2", sWV)
        a("s_cbranch_scc1 K_end")
        a("s_setprio 3")
        a("s_mov_b32 s60, s18"); a("s_mov_b32 s61, s19"); a("s_mov_b32 s62, 256"); a("s_mov_b32 s63, 0x20000")
        a("s_mov_b32 s40, 0")
        a("s_mov_b32 s41, 0x100000")
        a("s_mov_b64 exec, 1")
        a.label("C_loop")
        a("ds_read_b64 v[8:9], v%d offset:%d", vZero, C_PR)
        a("ds_read_b64 v[10:11], v%d offset:%d", vZero, C_O)
        a("s_waitcnt lgkmcnt(0)")
        a("v_add_u32 v8, v8, v9")
        a("v_or_b32 v10, v10, v11")
        a("v_readfirstlane_b32 s42, v8")
        a("v_readfirstlane_b32 s43, v10")
        a("s_cmp_lg_u32 s43, 0")
        a("s_cselect_b32 s42, 64, s42")
        a("s_sub_u32 s44, s42, s40")
        a("s_add_u32 s44, s44, s41")
        a("s_mov_b32 s40, s42")
        a("s_mov_b32 s41, 0")
        a("v_mov_b32 v12, s44")
        a("buffer_atomic_add v12, v%d, s[60:63], 0 offen offset:128 sc0 sc1", vZero)
        a("s_waitcnt vmcnt(0)")
        a("s_cmp_lg_u32 s43, 0")
        a("s_cbranch_scc1 C_done")
        a("v_readfirstlane_b32 s45, v12")
        a("s_add_u32 s45, s45, s44")
        a("s_lshr_b32 s46, s45, 20")
        a("s_and_b32 s45, s45, 0xfffff")
        a("s_sub_u32 s47, s42, %d", c["margin"])
        a("s_mul_i32 s47, s47, s46")
        a("s_cmp_gt_u32 s47, s45")
        a("s_cselect_b32 s47, 2, 0")
        a("v_mov_b32 v12, s47")
        a("ds_write_b32 v%d, v12 offset:%d", vZero, C_TH)
        for k in range(c["sleep"]): a("s_sleep 32")
        a("s_branch C_loop")
        a.label("C_done")
        a("ds_write_b32 v%d, v%d offset:%d", vZero, vZero, C_TH)
        a("s_waitcnt lgkmcnt(0)")
        a("s_mov_b64 exec, -1")
    if SEG[0]:
        for i in range(4):
            a("v_mov_b32 v%d, s%d", vPoll, 82 + i)
            a("buffer_store_dword v%d, v%d, s[92:95], 0 offen offset:%d", vPoll, vZero, 16 + 4 * i)
    a("s_branch K_end")
    for r in rares: r()


vBa = 8
AC = lambda e, j: 12 + (e * 3 + j) * 4
WR = lambda b, i: 108 + b * 32 + i * 4
BF = lambda j: 236 + 4 * j
vW, vXd0, vXd1 = 5, 6, 7
sXs, sWs, sSL_, sSH_, sQB, sPB, sBT = 44, 48, 52, 53, 41, 42, 43
sWo, sIa, sIb, sIc, sHD, sF0, sF1, sFT, sST = 82, 83, 84, 85, 86, 87, 88, 89, 55
sPs = 44

def gen_gemm(a, prof, wflags):
    def fst(i):
        if not OPT.get("fine"): return
        lab = a.newlabel("L_fs")
        a("s_cmp_lg_u32 s97, 0")
        a("s_cbranch_scc1 %s", lab)
        a("s_memrealtime s[98:99]")
        a("s_waitcnt lgkmcnt(0)")
        a("v_writelane_b32 v4, s98, %d", i + 1)
        a.label(lab)
    def wl(t):
        out = []
        for i in range(8):
            out.append(["buffer_load_dwordx4 %s, v%d, %s, s%d offen%s" % (vr(WR(t & 3, i)), vW, srd(sWs), sWo, wflags),
                        "s_add_u32 s%d, s%d, s%d" % (sWo, sWo, sIb if i == 3 else sIc if i == 7 else sIa)])
        return out
    a.label("S_w")
    a("s_mov_b32 s%d, 0", sWo)
    for t in range(4): emit(a, wl(t))
    a("s_setpc_b64 s[38:39]")
    a.label("S_g")
    def perm(t, e):
        wt = 248 + (e & 1) * 4
        return ["v_perm_b32 v%d, v%d, v%d, s%d" % (wt + jj, WR(t & 3, 2 * jj + 1) + (e >> 1), WR(t & 3, 2 * jj) + (e >> 1), sSH_ if e & 1 else sSL_) for jj in range(4)]
    for t in range(8):
        if t % 4 == 0:
            a("v_mov_b32 v0, s%d", sF1 if t else sF0)
            lab = "G_w%d" % t
            a.label(lab)
            a("ds_read_b32 v%d, v0", vPoll)
            a("s_waitcnt lgkmcnt(0)")
            a("v_readfirstlane_b32 s%d, v%d", sT2, vPoll)
            a("s_cmp_ge_u32 s%d, s%d", sT2, sFT)
            a("s_cbranch_scc1 %s_e", lab)
            a("s_sleep %d", OPT.get("gsleep", 2))
            a("s_branch %s", lab)
            a.label(lab + "_e")
            fst(2 if t == 0 else 4)
            if OPT.get("pflate") == 3 and t == 4: arrive(a, C_W0)
        if t == 1: fst(3)
        for j in range(3):
            a("ds_read_b128 %s, v%d offset:%d", vr(BF(j)), vBa + (t & 3), j * 4096)
        if t < 4:
            a("v_add_u32 v%d, s%d, v%d", vBa + t, sHD, vBa + t)
        a("s_waitcnt vmcnt(%d)", 24 if t == 0 else 16 if t < 6 else 8 * (7 - t))
        for s_ in perm(t, 0): a(s_)
        nxt = wl(t + 3) if 1 <= t <= 4 else []
        a("s_waitcnt lgkmcnt(0)")
        for e in range(8):
            m = ["%s %s, %s, %s, %s" % (MFMA, vr(AC(e, j)), vr(248 + (e & 1) * 4), vr(BF(j)), "0" if t == 0 else vr(AC(e, j))) for j in range(3)]
            p = perm(t, e + 1) if e < 7 else []
            a(m[0])
            for s_ in p[:2]: a(s_)
            a(m[1])
            for s_ in p[2:]: a(s_)
            a(m[2])
            if nxt:
                for s_ in nxt[e]: a(s_)
    a.fence()
    a("s_setpc_b64 s[38:39]")
    if OPT.get("fuse"):
        a.label("S_red")
        a("s_cmp_eq_u32 s37, 3")
        a("s_cbranch_scc1 S_red_e")
        a("s_mov_b32 s60, s18"); a("s_mov_b32 s61, s19"); a("s_mov_b32 s62, 256"); a("s_mov_b32 s63, 0x20000")
        a("s_lshl_b32 s%d, s%d, 2", sT1, sB)
        a.label("S_r0")
        a("buffer_load_dword v%d, v%d, s[60:63], s%d offen sc0 sc1", vPoll, vZero, sT1)
        a("s_waitcnt vmcnt(0)")
        a("v_readfirstlane_b32 s%d, v%d", sT2, vPoll)
        a("s_cmp_ge_u32 s%d, 16", sT2)
        a("s_cbranch_scc0 S_r0")
        a("s_add_u32 s60, s20, 0x%x", FWS); a("s_addc_u32 s61, s21, 0"); a("s_mov_b32 s62, 4096")
        a("s_lshl_b32 s64, s59, 4")
        a("s_add_u32 s64, s64, s%d", sB)
        a("s_lshl_b32 s%d, s64, 7", sT1)
        a("v_lshrrev_b32 v9, 2, v%d", vL16)
        a("v_and_b32 v9, 60, v9")
        a("s_lshr_b32 s65, s%d, 1", sH0)
        a("s_mul_i32 s65, s65, 3")
        a("s_add_u32 s65, s65, s37")
        a("s_mul_i32 s66, s64, %d", 16 * 49152)
        a("s_lshl_b32 s%d, s65, 10", sT2)
        a("s_add_u32 s66, s66, s%d", sT2)
        a("s_add_u32 s68, s20, s66"); a("s_addc_u32 s69, s21, 0"); a("s_mov_b32 s70, %d", 15 * 49152 + 1024); a("s_mov_b32 s71, 0x20000")
        a("s_mul_hi_u32 s66, s65, 0x%x", (2 ** 32 + 11) // 12)
        a("s_mul_i32 s%d, s66, 12", sT2)
        a("s_sub_u32 s65, s65, s%d", sT2)
        a("s_mul_i32 s64, s%d, 48", sB)
        a("s_lshr_b32 s%d, s65, 2", sT2)
        a("s_lshl_b32 s%d, s%d, 4", sT2, sT2)
        a("s_add_u32 s64, s64, s%d", sT2)
        a("s_lshl_b32 s64, s64, 11")
        a("s_lshl_b32 s%d, s59, 10", sT2)
        a("s_add_u32 s64, s64, s%d", sT2)
        a("s_lshl_b32 s%d, s66, 8", sT2)
        a("s_add_u32 s64, s64, s%d", sT2)
        a("s_and_b32 s%d, s65, 3", sT2)
        a("s_lshl_b32 s%d, s%d, 4", sT2, sT2)
        a("s_add_u32 s64, s64, s%d", sT2)
        a("v_lshlrev_b32 v11, 9, v9")
        a("v_lshrrev_b32 v8, 8, v%d", vL16)
        a("v_lshl_add_u32 v11, v8, 6, v11")
        a.label("S_r1")
        a("buffer_load_dword v%d, v9, s[60:63], s%d offen sc0 sc1", vPoll, sT1)
        a("s_waitcnt vmcnt(0)")
        a("v_cmp_ne_u32 vcc, 1, v%d", vPoll)
        a("s_cbranch_vccz S_r2")
        a("s_sleep %d", OPT.get("rsleep", 8))
        if OPT.get("rsleepA"):
            a("s_cmp_eq_u32 s59, 1")
            a("s_cbranch_scc1 S_r1")
            a("s_sleep %d", OPT["rsleepA"])
        a("s_branch S_r1")
        a.label("S_r2")
        for k in range(16):
            a("s_mov_b32 s%d, %d", sT2, k * 49152)
            a("buffer_load_dwordx4 %s, v%d, s[68:71], s%d offen sc0 sc1", vr(12 + 4 * k), vL16, sT2)
        a("s_mov_b32 s60, s16"); a("s_mov_b32 s61, s17"); a("s_mov_b32 s62, %d", 16 * 48 * 1024 * 2)
        for k in range(16):
            a("s_waitcnt vmcnt(%d)", 15 - k)
            for d in range(4):
                r = 12 + 4 * k + d
                if k == 0:
                    a("v_lshlrev_b32 v%d, 16, v%d", 80 + 2 * d, r)
                    a("v_and_b32 v%d, 0xffff0000, v%d", 81 + 2 * d, r)
                else:
                    a("v_lshlrev_b32 v88, 16, v%d", r)
                    a("v_and_b32 v89, 0xffff0000, v%d", r)
                    a("v_add_f32 v%d, v%d, v88", 80 + 2 * d, 80 + 2 * d)
                    a("v_add_f32 v%d, v%d, v89", 81 + 2 * d, 81 + 2 * d)
        for d in range(4):
            a("v_cvt_pk_bf16_f32 v%d, v%d, v%d", 92 + d, 80 + 2 * d, 81 + 2 * d)
        a("buffer_store_dwordx4 v[92:95], v11, s[60:63], s64 offen")
        a("s_waitcnt vmcnt(0)")
        a.label("S_red_e")
        a("s_setpc_b64 s[38:39]")
    def call(n): a("s_call_b64 s[38:39], %s", n)
    def gbar():
        arrive(a, C_BAR)
        a("s_add_u32 s%d, s%d, 4", sBT, sBT)
        poll(a, sT2, C_BAR, "s%d" % sBT, sleep=0)

    a.label("R_gemm")
    a("s_mov_b32 s97, 0")
    a("s_setprio %d", PRIO["g"])
    a("s_mov_b32 s%d, 0x05040100", sSL_)
    a("s_mov_b32 s%d, 0x07060302", sSH_)
    a("s_and_b32 s32, s%d, 1", sJ)
    a("s_lshr_b32 s33, s%d, 1", sJ)
    a("s_mul_i32 s%d, s%d, 12288", sQB, sJ)
    a("s_add_u32 s%d, s%d, %d", sQB, sQB, SCR)
    a("s_xor_b32 s%d, s%d, 2", sT1, sJ)
    a("s_mul_i32 s%d, s%d, 12288", sPB, sT1)
    a("s_add_u32 s%d, s%d, %d", sPB, sPB, SCR)
    a("v_and_b32 v24, 15, v0")
    a("v_lshrrev_b32 v25, 4, v0")
    a("v_lshlrev_b32 v26, 16, v25")
    a("v_lshl_add_u32 v%d, v24, 4, v26", vW)
    a("v_lshlrev_b32 v26, 10, v25")
    a("v_lshlrev_b32 v27, 1, v25")
    a("v_xor_b32 v27, v27, v24")
    a("v_lshl_add_u32 v%d, v27, 4, v26", vXd0)
    a("v_xor_b32 v27, 8, v27")
    a("v_lshl_add_u32 v%d, v27, 4, v26", vXd1)
    a("s_mul_i32 s34, s%d, 49152", sB)
    a("s_lshl_b32 s%d, s%d, 8", sT1, sJ)
    a("s_add_u32 s34, s34, s%d", sT1)
    a("s_add_u32 s35, s%d, s32", sH0)
    a("s_lshl_b32 s35, s35, 8")
    a("s_lshl_b32 s%d, s33, 21", sT1)
    a("s_add_u32 s35, s35, s%d", sT1)
    a("s_mov_b32 s%d, %d", sXs + 2, 49152 - 768); a("s_mov_b32 s%d, 0x20000", sXs + 3)
    a("s_mov_b32 s%d, %d", sWs + 2, 255 * 8192 + 256); a("s_mov_b32 s%d, 0x20000", sWs + 3)
    a("s_mov_b32 s%d, 8192", sIa); a("s_mov_b32 s%d, 8192", sIb); a("s_mov_b32 s%d, %d", sIc, 25 * 8192)
    a("s_mov_b32 s%d, 12288", sHD)
    a("s_lshl_b32 s%d, s33, 3", sF0)
    a("s_add_u32 s%d, s%d, %d", sF0, sF0, C_BAR2)
    a("s_add_u32 s%d, s%d, 4", sF1, sF0)
    a("s_mov_b32 s%d, 0", sBT)
    a("s_mov_b32 s%d, 0", sST)
    a("s_add_u32 s%d, s72, s34", sXs); a("s_addc_u32 s%d, s73, 0", sXs + 1)
    a("s_add_u32 s%d, s78, s35", sWs); a("s_addc_u32 s%d, s79, 0", sWs + 1)
    a.label("G_q")
    for j in range(3):
        a("s_add_u32 m0, s%d, %d", sQB, j * 4096)
        for i in range(4):
            a("s_mov_b32 s%d, %d", sT1, 16384 * j + 3072 * i)
            a("buffer_load_dwordx4 v%d, %s, s%d offen offset:%d%s lds", vXd1 if i & 1 else vXd0, srd(sXs), sT1, i * 1024, wflags)
    a("s_cmp_eq_u32 s%d, 1", sST)
    a("s_cbranch_scc1 G_q1")
    if OPT["warm"] is not None and OPT["gwait"]:
        poll(a, sT2, C_W, "2", sleep=0)
    call("S_w")
    if OPT.get("pflate") == 2: arrive(a, C_W0)
    fst(0)
    a("s_waitcnt vmcnt(32)")
    fst(1)
    a("s_branch G_q2")
    a.label("G_q1")
    a("s_waitcnt vmcnt(0)")
    a.label("G_q2")
    a("s_add_u32 s%d, s%d, 1", sFT, sST)
    a("s_lshl_b32 s%d, s%d, 2", sT1, sJ)
    a("v_mov_b32 v0, s%d", sT1)
    a("v_mov_b32 v%d, s%d", vPoll, sFT)
    a("ds_write_b32 v0, v%d offset:%d", vPoll, C_BAR2)
    a("v_lshrrev_b32 v24, 4, v%d", vL16)
    a("v_lshrrev_b32 v25, 4, v24")
    a("v_and_b32 v24, 15, v24")
    a("v_and_b32 v26, 7, v24")
    a("v_lshlrev_b32 v26, 1, v26")
    a("v_xor_b32 v26, v26, v25")
    a("v_lshlrev_b32 v27, 8, v24")
    a("s_mul_i32 s%d, s33, 24576", sT1)
    a("s_add_u32 s%d, s%d, %d", sT1, sT1, SCR)
    a("v_add_u32 v27, s%d, v27", sT1)
    for s in range(4):
        a("v_xor_b32 v28, %d, v26", 4 * s)
        a("v_lshl_add_u32 v%d, v28, 4, v27", vBa + s)
    call("S_g")
    fst(5)
    gbar()
    fst(6)
    a("v_add_u32 v252, s%d, v%d", sQB, vL16)
    a("v_add_u32 v253, s%d, v%d", sPB, vL16)
    a("s_cmp_eq_u32 s33, 1")
    a("s_cbranch_scc1 L_x1b")
    for k in range(12):
        a("ds_write_b128 v252, %s offset:%d", vr(AC(4, 0) + 4 * k), k * 1024)
    a("s_branch L_x1c")
    a.label("L_x1b")
    for k in range(12):
        a("ds_write_b128 v252, %s offset:%d", vr(AC(0, 0) + 4 * k), k * 1024)
    a("s_waitcnt lgkmcnt(0)")
    for k in range(48):
        a("v_mov_b32 v%d, v%d", AC(0, 0) + k, AC(4, 0) + k)
    a.label("L_x1c")
    gbar()
    fst(7)
    for k in range(12):
        a("ds_read_b128 %s, v253 offset:%d", vr(AC(4, 0) + 4 * k), k * 1024)
    a("v_lshrrev_b32 v8, 4, v%d", vL16)
    a("v_lshrrev_b32 v9, 4, v8")
    a("v_and_b32 v8, 15, v8")
    a("v_lshlrev_b32 v9, 9, v9")
    a("v_lshl_add_u32 v9, v8, 3, v9")
    a("v_add_u32 v9, s%d, v9", sPB)
    a("s_lshl_b32 s%d, s32, 2", sT1)
    a("s_lshl_b32 s%d, s%d, 3", sT2, sST)
    a("s_add_u32 s%d, s%d, s%d", sT1, sT1, sT2)
    a("v_mov_b32 v10, s%d", sT1)
    for k in range(12):
        a("s_waitcnt lgkmcnt(%d)", 11 - k)
        for r in range(4):
            a("v_add_f32 v%d, v%d, v%d", AC(0, 0) + 4 * k + r, AC(0, 0) + 4 * k + r, AC(4, 0) + 4 * k + r)
    for j in range(3):
        for r in range(4):
            d = AC(4, 0) + (j * 4 + r) * 2
            for k in range(2):
                a("v_cvt_pk_bf16_f32 v%d, v%d, v%d", d + k, AC(2 * k, j) + r, AC(2 * k + 1, j) + r)
            a("ds_write_b64 v9, %s offset:%d", vr(d, 2), j * 2048 + r * 128)
    a("s_waitcnt lgkmcnt(0)")
    a("s_mov_b64 exec, 1")
    a("ds_add_u32 v10, v%d offset:%d", vVal, C_G)
    a("s_mov_b64 exec, -1")
    fst(8)
    if OPT.get("fine"):
        a("s_cmp_lg_u32 s97, 0")
        a("s_cbranch_scc1 L_fdone")
        a("v_lshrrev_b32 v10, 2, v%d", vL16)
        a("v_add_u32 v10, 16, v10")
        a("buffer_store_dword v4, v10, s[92:95], 0 offen")
        a("s_waitcnt vmcnt(0)")
        a("v_mov_b32 v4, 1")
        a("s_mov_b32 s97, 1")
        a.label("L_fdone")
    a("s_cmp_eq_u32 s%d, 1", sST)
    a("s_cbranch_scc1 G_qd")
    a("s_setprio %d", PRIO["g2"])
    a("s_mov_b32 s%d, 1", sST)
    a("s_add_u32 s%d, s4, s34", sXs); a("s_addc_u32 s%d, s5, 0", sXs + 1)
    a("s_add_u32 s%d, s10, s35", sWs); a("s_addc_u32 s%d, s11, 0", sWs + 1)
    call("S_w")
    poll(a, sT2, C_A, "2", sleep=1)
    a("s_branch G_q")
    a.label("G_qd")
    if prof: pstamp(a, 1)
    a("s_setprio %d", PRIO["g3"])
    a("v_lshrrev_b32 v8, 4, v%d", vL16)
    a("v_and_b32 v9, 15, v8")
    a("v_lshrrev_b32 v8, 4, v8")
    a("v_lshlrev_b32 v8, 12, v8")
    a("v_lshl_add_u32 v%d, v9, 4, v8", vW)
    a("s_lshl_b32 s33, s%d, 17", sH0)
    a("s_lshl_b32 s%d, s%d, 8", sT1, sJ)
    a("s_add_u32 s33, s33, s%d", sT1)
    a("s_add_u32 s%d, s12, s33", sWs); a("s_addc_u32 s%d, s13, 0", sWs + 1); a("s_mov_b32 s%d, %d", sWs + 2, 255 * 1024 + 256)
    a("s_mov_b32 s%d, 1024", sIa); a("s_mov_b32 s%d, %d", sIb, 13 * 1024); a("s_mov_b32 s%d, %d", sIc, 13 * 1024)
    a("s_lshl_b32 s%d, s%d, 4", sT1, sB)
    a("s_lshr_b32 s%d, s%d, 1", sT2, sH0)
    a("s_add_u32 s%d, s%d, s%d", sT1, sT1, sT2)
    a("s_mul_i32 s%d, s%d, 49152", sT1, sT1)
    a("s_mul_i32 s%d, s%d, 12288", sT2, sJ)
    a("s_add_u32 s%d, s%d, s%d", sT1, sT1, sT2)
    a("s_add_u32 s%d, s20, s%d", sPs, sT1); a("s_addc_u32 s%d, s21, 0", sPs + 1)
    a("s_mov_b32 s%d, 12288", sPs + 2)
    a("s_mov_b32 s%d, 0", sST)
    a("s_mov_b32 s%d, 1", sFT)
    a("s_mov_b32 s56, %d", SCR); a("s_mov_b32 s%d, %d", sHD, NA * 8192); a("s_mov_b32 s%d, %d", sF0, C_O + 8); a("s_mov_b32 s%d, %d", sF1, C_O + 12)
    a.label("G_out")
    call("S_w")
    a("v_add_u32 v%d, s56, v%d", vBa, vL16)
    for u in range(1, 4):
        a("v_add_u32 v%d, %d, v%d", vBa + u, u * 1024, vBa)
    call("S_g")
    for j in range(3):
        for r in range(4):
            d = 108 + (j * 4 + r) * 4
            for k in range(4):
                a("v_cvt_pk_bf16_f32 v%d, v%d, v%d", d + k, AC(2 * k, j) + r, AC(2 * k + 1, j) + r)
            if r == 0:
                a("s_mov_b32 s%d, %d", sT1, j * 4096)
            a("buffer_store_dwordx4 %s, v%d, %s, s%d offen offset:%d sc0 sc1", vr(d), vL16, srd(sPs), sT1, r * 1024)
    a("s_waitcnt vmcnt(0)")
    if OPT.get("fuse"):
        a("s_mov_b64 exec, 1")
        a("ds_add_rtn_u32 v%d, v%d, v%d offset:%d", vPoll, vZero, vVal, C_F)
        a("s_waitcnt lgkmcnt(0)")
        a("v_readfirstlane_b32 s%d, v%d", sT2, vPoll)
        a("s_and_b32 s%d, s%d, 3", sT2, sT2)
        a("s_cmp_lg_u32 s%d, 3", sT2)
        a("s_cbranch_scc1 G_nf")
        a("s_add_u32 s60, s20, 0x%x", FWS); a("s_addc_u32 s61, s21, 0"); a("s_mov_b32 s62, 4096"); a("s_mov_b32 s63, 0x20000")
        a("s_lshl_b32 s%d, s%d, 7", sT1, sB)
        a("s_lshl_b32 s%d, s%d, 1", sT2, sH0)
        a("s_add_u32 s%d, s%d, s%d", sT1, sT1, sT2)
        a("s_lshl_b32 s%d, s%d, 11", sT2, sST)
        a("s_add_u32 s%d, s%d, s%d", sT1, sT1, sT2)
        a("buffer_store_dword v%d, v%d, s[60:63], s%d offen sc0 sc1", vVal, vZero, sT1)
        a.label("G_nf")
        a("s_mov_b64 exec, -1")
    a("s_cmp_eq_u32 s%d, 1", sST)
    a("s_cbranch_scc1 G_end")
    if prof: pstamp(a, 3)
    a("s_mov_b32 s%d, 1", sST)
    a("s_add_u32 s%d, s80, s33", sWs); a("s_addc_u32 s%d, s81, 0", sWs + 1)
    a("s_add_u32 s%d, s%d, %d", sPs, sPs, 256 * 49152); a("s_addc_u32 s%d, s%d, 0", sPs + 1, sPs + 1)
    a("s_mov_b32 s56, %d", BR0); a("s_mov_b32 s%d, %d", sHD, BSZ); a("s_mov_b32 s%d, %d", sF0, C_O); a("s_mov_b32 s%d, %d", sF1, C_O + 4)
    a("s_branch G_out")
    a.label("G_end")
    if OPT.get("fuse"):
        if prof: pstamp(a, 4)
        a("s_mov_b32 s59, 1")
        a("s_mov_b32 s37, s%d", sJ)
        call("S_red")
    if prof: pstamp(a, 2)
    a("s_branch K_end")


def gen_k1(a, kn, T=8.0, prof=False, nomem=False, wflags=" nt", oflags=" sc0 sc1"):
    kernel_begin(a, kn)
    a("s_cmp_ge_u32 s2, 256")
    a("s_cbranch_scc1 K_end")
    a("s_load_dwordx8 s[4:11], s[0:1], 0")
    a("s_load_dwordx8 s[72:79], s[0:1], 40")
    a("s_load_dwordx2 s[12:13], s[0:1], 32")
    a("s_load_dwordx4 s[16:19], s[0:1], 80")
    a("s_load_dwordx2 s[80:81], s[0:1], 72")
    a("s_load_dwordx2 s[20:21], s[0:1], 96")
    if OPT.get("ipf"):
        a("s_getpc_b64 s[60:61]")
        a.label("L_pc")
        a("s_and_b32 s61, s61, 0xffff")
        a("s_mov_b32 s62, K_last - L_pc")
        a("s_mov_b32 s63, 0x20000")
        a("s_lshr_b32 s64, s2, 3")
        a("s_and_b32 s64, s64, %d", 32 // OPT["ipf"] - 1)
        a("s_lshl_b32 s64, s64, %d", 11 + (OPT["ipf"].bit_length() - 1))
        a("v_lshlrev_b32 v1, 2, v0")
        for k in range(OPT["ipf"]):
            a("buffer_load_dword v%d, v1, s[60:63], s64 offen offset:%d", 208 + k, (k & 1) * 2048)
            if k & 1: a("s_add_u32 s64, s64, 4096")
    a("v_lshrrev_b32 v1, 6, v0")
    a("v_and_b32 v0, 63, v0")
    a("v_readfirstlane_b32 s%d, v1", sWV)
    a("v_lshlrev_b32 v%d, 4, v0", vL16)
    a("v_mov_b32 v%d, 0", vZero)
    a("v_mov_b32 v%d, 1", vVal)
    a("v_lshlrev_b32 v%d, 2, v0", vPoll)
    a("ds_write_b32 v%d, v%d", vPoll, vZero)
    a("s_and_b32 s%d, s2, 7", sX)
    a("s_lshr_b32 s%d, s2, 3", sI)
    a("s_lshr_b32 s%d, s%d, 1", sB, sI)
    a("s_and_b32 s%d, s%d, 1", sS2, sI)
    a("s_lshl_b32 s%d, s%d, 2", sH0, sX)
    a("s_lshl_b32 s%d, s%d, 1", sT1, sS2)
    a("s_add_u32 s%d, s%d, s%d", sH0, sH0, sT1)
    a("s_and_b32 s%d, s%d, 3", sJ, sWV)
    a("s_lshr_b32 s%d, s%d, 2", sBB, sI)
    a("s_lshl_b32 s%d, s%d, 1", sBB, sBB)
    a("s_and_b32 s%d, s%d, 3", sHB, sI)
    a("s_lshl_b32 s%d, s%d, 2", sT1, sX)
    a("s_add_u32 s%d, s%d, s%d", sHB, sHB, sT1)
    a("s_waitcnt lgkmcnt(0)")
    if prof:
        a("s_lshl_b32 s100, s2, 3")
        a("s_add_u32 s100, s100, s%d", sWV)
        a("s_lshl_b32 s100, s100, 6")
        a("s_add_u32 s100, s100, 0x2000000")
        a("s_add_u32 s92, s20, s100"); a("s_addc_u32 s93, s21, 0"); a("s_mov_b32 s94, 64"); a("s_mov_b32 s95, 0x20000")
        pstamp(a, 0)
    a("s_barrier")
    a("s_cmp_lt_u32 s%d, 4", sWV)
    a("s_cbranch_scc1 R_att")
    a("s_branch R_gemm")
    gen_gemm(a, prof, wflags)
    gen_att(a, T, prof, nomem, oflags)
    a.label("K_end")
    a("s_waitcnt vmcnt(0)")
    a("s_endpgm")
    a.label("K_last")


def main(fname, which=(0, 1), prio=None, opt=None, g=None, rflags="", **kw):
    import gen_v9
    if prio: PRIO.update(prio)
    if opt: OPT.update(opt)
    if g: GEO.update(g)
    geo()
    a = HAsm()
    if OPT.get("fuse"):
        kn = NAME + "_kernel"
        gen_k1(a, kn, **kw)
        txt = full_file([(kn, (256, 1, 1), (512, 1, 1), LDS_TOTAL)], a.text(), [kernel_desc(kn, 256)])
    else:
        gen_k1(a, "attn_kernel", **kw)
        gen_v9.gen_k2(a, "reduce_kernel", rflags)
        Ls = [("attn_kernel", (256, 1, 1), (512, 1, 1), LDS_TOTAL), ("reduce_kernel", (384, 1, 1), (256, 1, 1), 0)]
        txt = full_file([Ls[i] for i in which], a.text(), [kernel_desc("attn_kernel", 256), kernel_desc("reduce_kernel", 80)])
    open(fname, "w").write(txt)

if __name__ == "__main__":
    OPT.update(warm="", gwait=True, warmA=2, pflate=3, th=8, fuse=True, loc=None, pol=dict(A=""), woflags="", rsleep=4)
    GEO.update(KB=3, VB=3, NA=3)
    main("h1.s", wflags="")
    main("j1.s", wflags="", opt=dict(rsleepA=40))
    main("j2.s", wflags="", opt=dict(rsleepA=40, rsleep=8))
    main("j3.s", wflags="", opt=dict(rsleepA=40, rsleep=2))
    main("j4.s", wflags="", opt=dict(rsleepA=40, rsleep=4, gsleep=8))
```
